```python
import torch

def _softmax(x, axis=-1):
    return torch.softmax(x, dim=axis)
def _gelu(x):
    return torch.nn.functional.gelu(x, approximate="tanh")
def _silu(x):
    return torch.nn.functional.silu(x)
def _sigmoid(x):
    return torch.sigmoid(x)
def _layernorm(x, axis=-1, eps=1e-5):
    m = x.mean(dim=axis, keepdim=True)
    v = x.var(dim=axis, keepdim=True, unbiased=False)
    return (x - m) / torch.sqrt(v + eps)
def _scatter_add(tgt, idx, src, axis=0):
    return tgt.clone().index_add_(axis, idx, src)
def _segment_sum(src, seg, n):
    out = torch.zeros((n,) + src.shape[1:], dtype=src.dtype)
    return out.index_add_(0, seg, src)
def _pad(x, pw):
    flat = tuple(v for pair in reversed(pw) for v in pair)
    return torch.nn.functional.pad(x, flat)

kernel_name = 'gated_mix__compressed_kv_cla__mixer_channel_mlp__prompt'

def setup_inputs():

    _w = (lambda a: (lambda t: t.to(torch.bfloat16) if t.is_floating_point() else t)(torch.as_tensor(a)))
    def _A_setup():
        B, H, Sq, Sk, D, M = 1, 32, 2048, 2048, 128, 512
        Dc = 4 * D
        return {
            "x": _w((lambda *s: torch.randn(*s, dtype=torch.bfloat16) * 0.05)(B, Sq, M)),
            "c_kv": _w((lambda *s: torch.randn(*s, dtype=torch.bfloat16) * 0.8)(B, Sk, Dc)),
            "w_q": _w((lambda *s: torch.randn(*s, dtype=torch.bfloat16) * 6.4)(M, H, D) * (M ** -0.5)),
            "w_uk": _w((lambda *s: torch.randn(*s, dtype=torch.bfloat16) * 6.4)(Dc, H, D) * (Dc ** -0.5)),
            "w_uv": _w((lambda *s: torch.randn(*s, dtype=torch.bfloat16) * 0.8)(Dc, H, D) * (Dc ** -0.5)),
            "w_o": _w((lambda *s: torch.randn(*s, dtype=torch.bfloat16) * 0.8)(H, D, M) * ((H * D) ** -0.5)),
        }
    _A_in = _A_setup()

    def _B_setup():
        B, S, D, F = 1, 2048, 512, 1376
        return {
            "x": _w((lambda *s: torch.randn(*s, dtype=torch.bfloat16) * 0.05)(B, S, D)),
            "w1": _w((lambda *s: torch.randn(*s, dtype=torch.bfloat16) * 3.2)(D, F) * (D ** -0.5)),
            "b1": _w((lambda *s: torch.randn(*s, dtype=torch.bfloat16) * 1.6)(F)),
            "w2": _w((lambda *s: torch.randn(*s, dtype=torch.bfloat16) * 0.05)(F, D) * (F ** -0.5)),
            "b2": _w((lambda *s: torch.randn(*s, dtype=torch.bfloat16) * 0.05)(D)),
        }
    _B_in = _B_setup()

    return {
        "A_x": _A_in["x"],
        "A_c_kv": _A_in["c_kv"],
        "A_w_q": _A_in["w_q"],
        "A_w_uk": _A_in["w_uk"],
        "A_w_uv": _A_in["w_uv"],
        "A_w_o": _A_in["w_o"],
        "B_x": _B_in["x"],
        "B_w1": _B_in["w1"],
        "B_b1": _B_in["b1"],
        "B_w2": _B_in["w2"],
        "B_b2": _B_in["b2"],
        "gate_w": _w((lambda *s: torch.randn(*s, dtype=torch.bfloat16) * 0.05)(512) * 16.0),
    }

def reference(A_x, A_c_kv, A_w_q, A_w_uk, A_w_uv, A_w_o, B_x, B_w1, B_b1, B_w2, B_b2, gate_w):
    def _A_ref(x, c_kv, w_q, w_uk, w_uv, w_o):
        B, Sq, M = x.shape[0], x.shape[1], x.shape[2]
        Sk = c_kv.shape[1]
        H, D = w_q.shape[1], w_q.shape[2]
        q = torch.einsum("bqm,mhd->bhqd", x, w_q)
        k = torch.einsum("bkc,chd->bhkd", c_kv, w_uk)
        v = torch.einsum("bkc,chd->bhkd", c_kv, w_uv)
        scores = torch.einsum("bhqd,bhkd->bhqk", q, k) * (D ** -0.5)
        off = Sk - Sq
        qi = torch.arange(Sq)[:, None]
        kj = torch.arange(Sk)[None, :]
        cmask = kj <= (qi + off)
        scores = torch.where(cmask[None, None], scores, -1e9)
        p = _softmax(scores, axis=-1)
        ctx = torch.einsum("bhqk,bhkd->bhqd", p, v)
        return torch.einsum("bhqd,hdm->bqm", ctx, w_o)

    def _B_ref(x, w1, b1, w2, b2):
        y = _layernorm(x, axis=-1)
        h = _gelu(torch.einsum("bsd,df->bsf", y, w1) + b1)
        return torch.einsum("bsf,fd->bsd", h, w2) + b2

    x = A_x
    g = _sigmoid((x * gate_w).sum(-1, keepdims=True))
    a = _A_ref(x, A_c_kv, A_w_q, A_w_uk, A_w_uv, A_w_o)
    b = _B_ref(x, B_w1, B_b1, B_w2, B_b2)
    return g * a + (1 - g) * b
```

```python
import re

def v(i, n=1):
    return "v%d" % i if n == 1 else "v[%d:%d]" % (i, i + n - 1)
def a(i, n=1):
    return "a%d" % i if n == 1 else "a[%d:%d]" % (i, i + n - 1)
def s(i, n=1):
    return "s%d" % i if n == 1 else "s[%d:%d]" % (i, i + n - 1)

class Asm:
    def __init__(self):
        self.lines = []
    def I(self, text):
        self.lines.append("    " + text)
    def L(self, name):
        self.lines.append(name + ":")
    def C(self, text):
        self.lines.append("    ; " + text)
    def raw(self, text):
        self.lines.append(text)
    def ext(self, lst):
        for t in lst:
            if t.endswith(":"):
                self.lines.append(t)
            else:
                self.I(t)
    def text(self):
        return "\n".join(self.lines) + "\n"

def kernel_header(name):
    return [".globl %s" % name, ".p2align 8", ".type %s,@function" % name, name + ":"]

def kernel_desc(name, vgpr, sgpr, accum, kernarg=120):
    return "\n".join([
        ".amdhsa_kernel %s" % name,
        "  .amdhsa_next_free_vgpr %d" % vgpr,
        "  .amdhsa_next_free_sgpr %d" % sgpr,
        "  .amdhsa_accum_offset %d" % accum,
        "  .amdhsa_group_segment_fixed_size 0",
        "  .amdhsa_kernarg_size %d" % kernarg,
        "  .amdhsa_user_sgpr_count 2",
        "  .amdhsa_user_sgpr_kernarg_segment_ptr 1",
        "  .amdhsa_system_sgpr_workgroup_id_x 1",
        "  .amdhsa_float_denorm_mode_32 3",
        "  .amdhsa_float_denorm_mode_16_64 3",
        ".end_amdhsa_kernel"])

_REG = re.compile(r"^(-?)(\|?)(abs\()?([vas])(?:(\d+)|\[(\d+):(\d+)\])\)?\|?$")
def regs_of(op):
    op = op.strip()
    m = _REG.match(op)
    if m:
        k = m.group(4)
        if m.group(5) is not None:
            return {(k, int(m.group(5)))}
        return {(k, i) for i in range(int(m.group(6)), int(m.group(7)) + 1)}
    if op in ("vcc", "vcc_lo", "vcc_hi"):
        return {("vcc", 0)}
    if op in ("exec", "exec_lo", "exec_hi"):
        return {("exec", 0)}
    if op == "m0":
        return {("m0", 0)}
    return set()

TRANS = ("v_exp_f32", "v_log_f32", "v_rcp_f32", "v_rsq_f32", "v_sqrt_f32", "v_sin_f32", "v_cos_f32")

class Ins:
    __slots__ = ("text", "op", "ops", "cls", "wr", "rd", "idx", "mods", "passes", "srcC", "srcAB", "wide_store", "is_lds_dma", "line")
    def __init__(self, text, line):
        self.text = text; self.line = line
        t = text.split(";")[0].strip()
        parts = t.split(None, 1)
        self.op = parts[0]
        rest = parts[1] if len(parts) > 1 else ""
        ops = []; cur = ""; d = 0
        for ch in rest:
            if ch == "[": d += 1
            if ch == "]": d -= 1
            if ch == "," and d == 0:
                ops.append(cur.strip()); cur = ""
            else:
                cur += ch
        if cur.strip(): ops.append(cur.strip())
        mods = []
        if ops:
            lastp = ops[-1].split()
            ops[-1] = lastp[0]; mods = lastp[1:]
        self.ops = ops; self.mods = mods
        self.wr = set(); self.rd = set(); self.passes = 0; self.srcC = set(); self.srcAB = set()
        self.wide_store = False; self.is_lds_dma = False
        op = self.op
        R = regs_of
        if op.startswith("v_mfma"):
            self.cls = "mfma"
            self.passes = 8 if "32x32x16" in op else (4 if "16x16x32" in op else 16)
            self.wr = R(ops[0]); self.srcAB = R(ops[1]) | R(ops[2]); self.srcC = R(ops[3])
            self.rd = self.srcAB | self.srcC
        elif op.startswith("v_"):
            self.cls = "trans" if op.replace("_e32", "").replace("_e64", "") in TRANS else "valu"
            if op.startswith("v_cmpx"):
                self.wr = R(ops[0]) | {("exec", 0)}; self.rd = set().union(*[R(o) for o in ops[1:]])
            elif op.startswith("v_cmp"):
                self.wr = R(ops[0]); self.rd = set().union(*[R(o) for o in ops[1:]])
            elif op.startswith("v_permlane32_swap") or op.startswith("v_permlane16_swap"):
                self.wr = R(ops[0]) | R(ops[1]); self.rd = set(self.wr)
            elif op.startswith("v_add_co") or op.startswith("v_sub_co") or op.startswith("v_addc_co") or op.startswith("v_subb_co"):
                self.wr = R(ops[0]) | R(ops[1]); self.rd = set().union(*[R(o) for o in ops[2:]])
            else:
                self.wr = R(ops[0]); self.rd = set().union(*[R(o) for o in ops[1:]]) if len(ops) > 1 else set()
                if op.startswith("v_fmac") or op.startswith("v_dot2c") or op.startswith("v_writelane") or op.startswith("v_mac") or op.startswith("v_pk_fmac"):
                    self.rd |= self.wr
                if op.startswith("v_cndmask") and len(ops) == 3:
                    self.rd |= {("vcc", 0)}
            self.rd |= {("exec", 0)} if False else set()
        elif op.startswith("ds_"):
            self.cls = "ds"
            if op.startswith("ds_read") or op.startswith("ds_bpermute") or op.startswith("ds_swizzle") or op.startswith("ds_permute"):
                self.wr = R(ops[0]); self.rd = set().union(*[R(o) for o in ops[1:]])
            else:
                self.rd = set().union(*[R(o) for o in ops])
                if "rtn" in op:
                    self.wr = R(ops[0]); self.rd = set().union(*[R(o) for o in ops[1:]])
        elif op.startswith("buffer_") or op.startswith("global_") or op.startswith("flat_"):
            self.cls = "vmem"
            if op.startswith("buffer_wbl2") or op.startswith("buffer_inv"):
                pass
            elif "lds" in mods or "_lds_" in op:
                self.is_lds_dma = True
                self.rd = set().union(*[R(o) for o in ops]) | {("m0", 0)}
            elif "_load" in op:
                self.wr = R(ops[0]); self.rd = set().union(*[R(o) for o in ops[1:]])
            elif "_store" in op:
                self.rd = set().union(*[R(o) for o in ops])
                if "x3" in op or "x4" in op:
                    self.wide_store = True
            elif "_atomic" in op:
                self.rd = set().union(*[R(o) for o in ops])
                if "sc0" in mods: self.wr = R(ops[0])
        elif op.startswith("s_"):
            self.cls = "salu"
            if op in ("s_nop", "s_waitcnt", "s_barrier", "s_endpgm", "s_branch", "s_setprio", "s_sleep") or op.startswith("s_cbranch"):
                self.cls = "ctl"
                if op == "s_cbranch_vccnz" or op == "s_cbranch_vccz": self.rd = {("vcc", 0)}
                if op.startswith("s_cbranch_scc"): self.rd = {("scc", 0)}
                if op.startswith("s_cbranch_exec"): self.rd = {("exec", 0)}
            elif op.startswith("s_cmp") or op.startswith("s_bitcmp"):
                self.wr = {("scc", 0)}; self.rd = set().union(*[R(o) for o in ops])
            elif op.startswith("s_load") or op.startswith("s_buffer_load") or op.startswith("s_memtime") or op.startswith("s_memrealtime"):
                self.cls = "smem"
                self.wr = R(ops[0]); self.rd = set().union(*[R(o) for o in ops[1:]]) if len(ops) > 1 else set()
            else:
                self.wr = R(ops[0]) if ops else set(); self.rd = set().union(*[R(o) for o in ops[1:]]) if len(ops) > 1 else set()
                if "saveexec" in op: self.wr |= {("exec", 0)}; self.rd |= {("exec", 0)}
        else:
            raise ValueError("unknown instr: " + text)
    def ws(self):
        if self.op == "s_nop":
            return int(self.ops[0], 0) + 1
        return 1

def _ov(x, y):
    return bool(x & y)
def _vg(x):
    return {r for r in x if r[0] in ("v", "a")}
def _sg(x):
    return {r for r in x if r[0] in ("s", "vcc")}

def required_ws(p, c):
    need = 0
    isvalu_p = p.cls in ("valu", "trans")
    isvalu_c = c.cls in ("valu", "trans")
    if isvalu_p:
        pw = _vg(p.wr)
        if c.cls == "mfma" and _ov(pw, c.rd): need = max(need, 2)
        if c.op.startswith("v_permlane") and _ov(pw, c.rd): need = max(need, 2)
        if (c.op.startswith("v_readlane") or c.op.startswith("v_readfirstlane")) and _ov(pw, c.rd): need = max(need, 1)
        if p.cls == "trans" and isvalu_c and c.cls != "trans" and _ov(pw, c.rd): need = max(need, 1)
        if p.cls == "trans" and c.cls in ("trans",) and _ov(pw, c.rd): need = max(need, 1)
        if p.cls == "trans" and c.cls in ("vmem", "ds") and _ov(pw, c.rd): need = max(need, 1)
        if "dpp" in c.text and _ov(pw, c.rd): need = max(need, 2)
        sw = _sg(p.wr)
        if sw:
            if isvalu_c and _ov(sw, c.rd): need = max(need, 2)
            if c.cls == "vmem" and _ov(sw, c.rd): need = max(need, 5)
            if (c.op.startswith("v_readlane") or c.op.startswith("v_writelane")) and _ov(sw, c.rd): need = max(need, 4)
        if ("exec", 0) in p.wr:
            if c.cls == "mfma": need = max(need, 4)
            if c.op.startswith("v_readlane") or c.op.startswith("v_readfirstlane") or c.op.startswith("v_permlane"): need = max(need, 4)
    if p.cls == "salu" and ("m0", 0) in p.wr and c.is_lds_dma: need = max(need, 1)
    if p.cls == "vmem" and p.wide_store:
        data = _vg(regs_of(p.ops[0])) if p.op.startswith("buffer") else _vg(regs_of(p.ops[1]) | regs_of(p.ops[0]))
        if isvalu_c and _ov(data, c.wr): need = max(need, 2)
        elif c.cls in ("mfma", "ds", "vmem") and _ov(data, c.wr): need = max(need, 1)
    if p.cls == "mfma":
        P = p.passes
        t_valu = {2: 5, 4: 8, 8: 12, 16: 20}[P]
        t_ovl = {2: 4, 4: 6, 8: 10, 16: 18}[P]
        t_war = {2: 1, 4: 3, 8: 7, 16: 15}[P]
        D = p.wr
        if c.cls == "mfma":
            if _ov(D, c.srcAB): need = max(need, t_valu)
            if _ov(D, c.srcC):
                if c.srcC == D and c.passes == P: pass
                else: need = max(need, t_ovl)
            if _ov(D, c.wr) and not _ov(D, c.srcC): need = max(need, t_ovl)
        elif isvalu_c:
            if _ov(D, c.rd) or _ov(D, c.wr): need = max(need, t_valu)
            if _ov(p.srcC, c.wr): need = max(need, t_war)
        elif c.cls in ("vmem", "ds"):
            if _ov(D, c.rd) or _ov(D, c.wr): need = max(need, t_valu)
    return need

class Prog:
    def __init__(self, lines):
        self.ins = []; self.labels = {}
        for ln, t in enumerate(lines):
            t0 = t.split(";")[0].strip()
            if not t0 or t0.startswith("."): continue
            if t0.endswith(":"):
                self.labels[t0[:-1]] = len(self.ins); continue
            self.ins.append(Ins(t0, ln))
        n = len(self.ins)
        self.preds = [[] for _ in range(n + 1)]
        for i, x in enumerate(self.ins):
            if x.op == "s_endpgm": continue
            if x.op == "s_branch":
                self.preds[self.labels[x.ops[0]]].append(i); continue
            if x.op.startswith("s_cbranch"):
                self.preds[self.labels[x.ops[0]]].append(i)
            self.preds[i + 1].append(i)
    def check_hazards(self, maxd=21):
        errs = []
        for i, c in enumerate(self.ins):
            stack = [(p, 0) for p in self.preds[i]]
            seen = {}
            while stack:
                j, d = stack.pop()
                if d >= maxd: continue
                if seen.get(j, 99) <= d: continue
                seen[j] = d
                p = self.ins[j]
                need = required_ws(p, c)
                if need > d:
                    errs.append("HAZARD need %d have %d:\n   L%d %s\n   L%d %s" % (need, d, p.line, p.text, c.line, c.text))
                for q in self.preds[j]:
                    stack.append((q, d + p.ws()))
        return errs

    def trace(self, decide, max_steps=200000):
        pc = 0; out = []; cnt = {}
        while pc < len(self.ins) and len(out) < max_steps:
            x = self.ins[pc]; out.append(pc)
            if x.op == "s_endpgm": break
            if x.op == "s_branch":
                pc = self.labels[x.ops[0]]; continue
            if x.op.startswith("s_cbranch"):
                cnt[pc] = cnt.get(pc, 0) + 1
                if decide(pc, x, cnt[pc]):
                    pc = self.labels[x.ops[0]]; continue
            pc += 1
        return out
    def check_waits(self, tr):
        errs = []
        vm = []; lg = []
        for pc in tr:
            x = self.ins[pc]
            if x.op == "s_waitcnt":
                t = x.text
                m = re.search(r"vmcnt\((\d+)\)", t)
                if m:
                    n = int(m.group(1)); vm = vm[len(vm) - n:] if n < len(vm) and n > 0 else ([] if n == 0 else vm)
                m = re.search(r"lgkmcnt\((\d+)\)", t)
                if m:
                    n = int(m.group(1))
                    if any(q[0].cls == "smem" for q in lg) and n != 0:
                        errs.append("lgkmcnt(N>0) with SMEM outstanding at L%d" % x.line)
                    lg = lg[len(lg) - n:] if n < len(lg) and n > 0 else ([] if n == 0 else lg)
                continue
            touched = x.rd | x.wr
            for q, dst in vm + lg:
                if dst & touched:
                    errs.append("PENDING: L%d %s  uses/overwrites pending result of L%d %s" % (x.line, x.text, q.line, q.text))
            if x.cls == "vmem" and not (x.op.startswith("buffer_wbl2") or x.op.startswith("buffer_inv")):
                vm.append((x, set(x.wr)))
                if len(vm) > 63: errs.append("vmcnt overflow at L%d" % x.line)
            elif x.cls == "ds":
                lg.append((x, set(x.wr)))
            elif x.cls == "smem":
                lg.append((x, set(x.wr)))
        return errs
```

```python
from asmlib import *
from layout import *
import math, struct
OPT = {}
def fbits(x): return struct.unpack("<I", struct.pack("<f", x))[0]
QSCALE = math.log2(math.e) / math.sqrt(128.0)
GC0 = -2.0 * math.log2(math.e) * math.sqrt(2.0 / math.pi)
GC1 = GC0 * 0.044715
V_L16 = 1; V_WOFF = 2; V_RC0 = 3; V_RC1 = 4; V_RN0 = 5; V_RN1 = 6; V_RB0 = 7; V_RB1 = 8
V_ST = 9
V_RSTD = 13
V_MR = 17
V_LANE = 21; V_G4 = 22
V_B1P = 176
V_ONES = 24
V_B1 = 28
V_B1F = 32
V_CS = 40
V_T = 48
V_ACC = 64
V_F = 96
V_PK = 128
V_H = 144
NV = 176
S_WS = 4; S_W = 8; S_X = 12; S_B1 = 16; S_GW = 20
S_UK = 24; S_UV = 26
S_C = 28; S_N = 29; S_CB = 30; S_PF = 31; S_STR16 = 32; S_ST = 33; S_STP = 34; S_WV = 35; S_MB = 36
S_T0 = 37; S_T1 = 38; S_T2 = 39; S_SOFF = 40; S_SC = 41; S_C0 = 42; S_C1 = 43; S_END = 44; S_KIND = 45; S_B1O = 46
S_M = 48

def X(rt, s_): return a((rt * 16 + s_) * 4, 4)
def acc(ct, rt): return V_ACC + (ct * 4 + rt) * 4
def fr(slot): return V_F + 4 * slot
def mf(d, A_, B_, c): return "v_mfma_f32_16x16x32_bf16 %s, %s, %s, %s" % (d, A_, B_, c)

def tr_reads(grp, nxt):
    ct = grp >> 2; s0 = (grp & 3) * 4
    base = (V_RN0 if nxt else V_RC0) + ct
    o = []
    for k in range(4):
        slot = (grp & 1) * 4 + k
        for h in range(2):
            o.append("ds_read_b64_tr_b16 %s, %s offset:%d" % (v(fr(slot) + 2 * h, 2), v(base), (s0 + k) * 2048 + h * 256))
    return o

def group_mfmas(kind, grp):
    ct = grp >> 2; s0 = (grp & 3) * 4
    o = []
    for rt in range(4):
        for k in range(4):
            s_ = s0 + k
            W = v(fr((grp & 1) * 4 + k), 4); d = v(acc(ct, rt), 4)
            c = "0" if s_ == 0 else d
            o.append(mf(d, X(rt, s_), W, c) if kind == "V" else mf(d, W, X(rt, s_), c))
    if kind == "H":
        for k in range(4):
            s_ = s0 + k
            W = v(fr((grp & 1) * 4 + k), 4); d = v(V_CS + ct * 4, 4)
            o.append(mf(d, W, v(V_ONES, 4), "0" if s_ == 0 else d))
    return o

def cvt(dst, a0, a1): return "v_cvt_pk_bf16_f32 %s, %s, %s" % (v(dst), v(a0), v(a1))
def store(src, vo, off=0): return "buffer_store_dwordx4 %s, %s, %s, %s offen offset:%d" % (v(src, 4), v(vo), s(S_WS, 4), "%s", off)

def gelu_tile(ct, rt, dst):
    o = []
    A_ = acc(ct, rt); T = V_H + (rt & 1) * 8
    for r in range(4):
        o.append("v_fma_f32 %s, -%s, %s, %s" % (v(T + r), v(V_CS + ct * 4 + r), v(V_MR + rt), v((V_B1F if ct == 0 else V_B1P) + r)))
    for r in range(4):
        o.append("v_fma_f32 %s, %s, %s, %s" % (v(A_ + r), v(A_ + r), v(V_RSTD + rt), v(T + r)))
    for r in range(4): o.append("v_mul_f32 %s, %s, %s" % (v(T + r), v(A_ + r), v(A_ + r)))
    for r in range(4): o.append("v_fma_f32 %s, %s, %s, %s" % (v(T + r), v(T + r), s(S_C1), v(V_T + 15)))
    for r in range(4): o.append("v_mul_f32 %s, %s, %s" % (v(T + r), v(T + r), v(A_ + r)))
    for r in range(4): o.append("v_exp_f32 %s, %s" % (v(T + r), v(T + r)))
    for r in range(4): o.append("v_add_f32 %s, 1.0, %s" % (v(T + r), v(T + r)))
    for r in range(4): o.append("v_rcp_f32 %s, %s" % (v(T + r), v(T + r)))
    for r in range(4): o.append("v_mul_f32 %s, %s, %s" % (v(A_ + r), v(A_ + r), v(T + r)))
    o.append(cvt(dst, A_, A_ + 1)); o.append(cvt(dst + 1, A_ + 2, A_ + 3))
    return o

def partA(kind):
    o = []
    if kind in ("K", "Q"):
        for rt in range(4):
            A_ = acc(0, rt)
            if kind == "Q":
                for r in range(4): o.append("v_mul_f32 %s, %s, %s" % (v(A_ + r), s(S_SC), v(A_ + r)))
            o += [cvt(V_PK + 4 * rt, A_, A_ + 1), cvt(V_PK + 4 * rt + 1, A_ + 2, A_ + 3)]
    elif kind == "V":
        for b in range(2):
            d = V_PK + 4 * b
            o += [cvt(d, acc(0, 2 * b), acc(0, 2 * b) + 1), cvt(d + 1, acc(0, 2 * b) + 2, acc(0, 2 * b) + 3),
                  cvt(d + 2, acc(0, 2 * b + 1), acc(0, 2 * b + 1) + 1), cvt(d + 3, acc(0, 2 * b + 1) + 2, acc(0, 2 * b + 1) + 3)]
            o.append(store(d, V_ST + b, 0) % s(S_ST))
    else:
        for r in range(4): o.append("v_mov_b32 %s, %s" % (v(V_B1P + r), v(V_B1F + 4 + r)))
        for rt in range(4):
            o += gelu_tile(0, rt, V_PK + 4 * rt)
    return o

def partB(kind):
    o = []
    if kind in ("K", "Q"):
        for rt in range(4):
            A_ = acc(1, rt)
            if kind == "Q":
                for r in range(4): o.append("v_mul_f32 %s, %s, %s" % (v(A_ + r), s(S_SC), v(A_ + r)))
            o += [cvt(V_PK + 4 * rt + 2, A_, A_ + 1), cvt(V_PK + 4 * rt + 3, A_ + 2, A_ + 3)]
            o.append(store(V_PK + 4 * rt, V_ST + rt, 0) % s(S_STP))
    elif kind == "V":
        for b in range(2):
            d = V_PK + 8 + 4 * b
            o += [cvt(d, acc(1, 2 * b), acc(1, 2 * b) + 1), cvt(d + 1, acc(1, 2 * b) + 2, acc(1, 2 * b) + 3),
                  cvt(d + 2, acc(1, 2 * b + 1), acc(1, 2 * b + 1) + 1), cvt(d + 3, acc(1, 2 * b + 1) + 2, acc(1, 2 * b + 1) + 3)]
            o.append(store(d, V_ST + b, 1024) % s(S_STP))
    else:
        for rt in range(4):
            o += gelu_tile(1, rt, V_PK + 4 * rt + 2)
            o.append(store(V_PK + 4 * rt, V_ST + rt, 0) % s(S_STP))
    return o

def spread(gaps, items, g0, g1):
    n = g1 - g0
    for i, it in enumerate(items):
        gaps[g0 + (i * n) // max(len(items), 1)].append(it)

def dma_w():
    pre = ["s_add_u32 %s, %s, 3" % (s(S_T0), s(S_C)),
           "s_and_b32 %s, %s, 3" % (s(S_T0), s(S_T0)),
           "s_lshl_b32 %s, %s, 15" % (s(S_T0), s(S_T0)),
           "s_lshl_b32 %s, %s, 13" % (s(S_T1), s(S_WV)),
           "s_add_u32 %s, %s, %s" % (s(S_T0), s(S_T0), s(S_T1))]
    grp = []
    for i in range(8):
        g = []
        if i == 0: g.append("s_mov_b32 m0, %s" % s(S_T0))
        else:
            g.append("s_add_u32 m0, m0, 1024")
        if i > 0: g.append("s_add_u32 %s, %s, %s" % (s(S_SOFF), s(S_SOFF), s(S_STR16)))
        else: g.append("s_nop 0")
        g.append("buffer_load_dwordx4 %s, %s, %s offen lds" % (v(V_WOFF), s(S_W, 4), s(S_SOFF)))
        grp.append(g)
    return pre, grp

def pf_setup(kind):
    o = []
    if kind == "KV":
        o += ["s_cmp_lt_u32 %s, 128" % s(S_PF),
              "s_cselect_b32 %s, %s, %s" % (s(S_W), s(S_UK), s(S_UV)),
              "s_cselect_b32 %s, %s, %s" % (s(S_W + 1), s(S_UK + 1), s(S_UV + 1)),
              "s_and_b32 %s, %s, 127" % (s(S_SOFF), s(S_PF)),
              "s_lshl_b32 %s, %s, 6" % (s(S_SOFF), s(S_SOFF))]
    else:
        o += ["s_lshl_b32 %s, %s, 6" % (s(S_SOFF), s(S_PF))]
    o += ["s_lshl_b32 %s, %s, 3" % (s(S_T2), s(S_STR16)),
          "s_mul_i32 %s, %s, %s" % (s(S_T2), s(S_T2), s(S_WV)),
          "s_add_u32 %s, %s, %s" % (s(S_SOFF), s(S_SOFF), s(S_T2)),
          "s_add_u32 %s, %s, 1" % (s(S_PF), s(S_PF))]
    return o

def st_setup(kind):
    o = ["s_mov_b32 %s, %s" % (s(S_STP), s(S_ST))]
    if kind == "K":
        o += ["s_lshr_b32 %s, %s, 2" % (s(S_T0), s(S_CB)), "s_lshl_b32 %s, %s, 20" % (s(S_T0), s(S_T0)),
              "s_and_b32 %s, %s, 3" % (s(S_T1), s(S_CB)), "s_lshl_b32 %s, %s, 10" % (s(S_T1), s(S_T1))]
    elif kind == "V":
        o += ["s_lshr_b32 %s, %s, 2" % (s(S_T0), s(S_CB)), "s_and_b32 %s, %s, 31" % (s(S_T0), s(S_T0)), "s_lshl_b32 %s, %s, 20" % (s(S_T0), s(S_T0)),
              "s_and_b32 %s, %s, 3" % (s(S_T1), s(S_CB)), "s_lshl_b32 %s, %s, 11" % (s(S_T1), s(S_T1)), "s_add_u32 %s, %s, 8192" % (s(S_T1), s(S_T1))]
    elif kind == "Q":
        o += ["s_lshr_b32 %s, %s, 2" % (s(S_T0), s(S_CB)), "s_lshl_b32 %s, %s, 19" % (s(S_T0), s(S_T0)),
              "s_and_b32 %s, %s, 3" % (s(S_T1), s(S_CB)), "s_lshl_b32 %s, %s, 10" % (s(S_T1), s(S_T1))]
    else:
        o += ["s_mov_b32 %s, 0" % s(S_T0), "s_lshl_b32 %s, %s, 10" % (s(S_T1), s(S_CB))]
    o += ["s_add_u32 %s, %s, %s" % (s(S_T0), s(S_T0), s(S_T1)), "s_add_u32 %s, %s, %s" % (s(S_ST), s(S_T0), s(S_END + 3))]
    return o
S_WB = S_END + 3

def b1_loads():
    return ["s_add_u32 %s, %s, 1" % (s(S_B1O), s(S_CB)), "s_lshl_b32 %s, %s, 6" % (s(S_B1O), s(S_B1O)),
            "buffer_load_dwordx2 %s, %s, %s, %s offen" % (v(V_B1, 2), v(V_T + 14), s(S_B1, 4), s(S_B1O)),
            "buffer_load_dwordx2 %s, %s, %s, %s offen offset:32" % (v(V_B1 + 2, 2), v(V_T + 14), s(S_B1, 4), s(S_B1O))]

def place(gaps, cap, items, g0, g1, step=None):
    n = len(items)
    if n == 0: return
    g = g0
    for i, it in enumerate(items):
        lst = it if isinstance(it, list) else [it]
        want = g0 + (i * (g1 - g0)) // n
        g = max(g, want)
        while g < len(gaps) - 1 and cap[g] < min(len(lst), 2): g += 1
        gaps[g] += lst; cap[g] -= len(lst)

def body(kind, pfkind):
    o = ["s_waitcnt vmcnt(12)", "s_barrier"]
    pre, dg = dma_w()
    mf_all = []
    for grp in range(8): mf_all += group_mfmas(kind, grp)
    per = len(mf_all) // 8; n = len(mf_all)
    gaps = [[] for _ in range(n)]; cap = [2 if kind != "H" else 4] * n
    for grp in range(8):
        rds = tr_reads((grp + 1) % 8, grp == 7)
        for k, r_ in enumerate(rds):
            gaps[grp * per + k].append(r_); cap[grp * per + k] -= 1
    pB = partB(kind); pA = partA(kind)
    head = st_setup(kind)
    if kind == "H":
        unp = []
        for ct in range(2):
            for k in range(2):
                unp.append("v_lshlrev_b32 %s, 16, %s" % (v(V_B1F + ct * 4 + 2 * k), v(V_B1 + ct * 2 + k)))
                unp.append("v_and_b32 %s, 0xffff0000, %s" % (v(V_B1F + ct * 4 + 2 * k + 1), v(V_B1 + ct * 2 + k)))
        head = unp + b1_loads() + head
    head = head + pf_setup(pfkind) + pre
    hg = 0
    for x in head:
        while cap[hg] < 1 or (kind == "H" and len(gaps[hg]) >= 2): hg += 1
        gaps[hg].append(x); cap[hg] -= 1
    for i, g in enumerate(dg):
        gi = max(hg + 1, i * per + 9) if i > 0 else hg + 1
        if i > 0: gi = max(gi, lastg + 2)
        gaps[gi] += g[:2]; cap[gi] -= 2
        gaps[gi + 1] += g[2:]; cap[gi + 1] -= 1
        lastg = gi + 1
    first_b = 3 if kind != "H" else max(hg + 1, 6)
    place(gaps, cap, pB, first_b, 4 * per - 2)
    place(gaps, cap, pA, 4 * per + (3 if kind != "H" else 6), 8 * per - 8)
    adv = ["s_add_u32 %s, %s, 1" % (s(S_C), s(S_C)), "s_add_u32 %s, %s, 1" % (s(S_CB), s(S_CB)),
           "s_add_u32 %s, %s, 1" % (s(S_T0), s(S_C)), "s_and_b32 %s, %s, 3" % (s(S_T0), s(S_T0)), "s_lshl_b32 %s, %s, 15" % (s(S_T0), s(S_T0)),
           "v_mov_b32 %s, %s" % (v(V_RC0), v(V_RN0)), "v_mov_b32 %s, %s" % (v(V_RC1), v(V_RN1)),
           "v_add_u32 %s, %s, %s" % (v(V_RN0), s(S_T0), v(V_RB0)), "v_add_u32 %s, %s, %s" % (v(V_RN1), s(S_T0), v(V_RB1)),
           "s_cmp_lt_u32 %s, %s" % (s(S_CB), s(S_END))]
    ag = 7 * per + 8
    for x in adv:
        while cap[ag] < 1 and ag < n - 1: ag += 1
        gaps[ag].append(x); cap[ag] -= 1
    for grp in range(8):
        if OPT.get("gt"):
            o.append("s_memtime s[92:93]")
        o.append("s_waitcnt lgkmcnt(0)")
        if OPT.get("gt"):
            o.append("s_sub_u32 s93, s92, s94"); o.append("s_mov_b32 s94, s92")
            o.append("s_add_u32 s%d, s%d, s93" % (80 + grp, 80 + grp))
        for i in range(per):
            o.append(mf_all[grp * per + i]); o += gaps[grp * per + i]
    if OPT.get("nodma"): o = [x for x in o if not (x.startswith("buffer_load") and x.endswith("lds"))]
    if OPT.get("nostore"): o = [x for x in o if not x.startswith("buffer_store")]
    return o

def segment(A, L, kind, pfkind, tag):
    I = A.I
    I("s_cmp_ge_u32 %s, %s" % (s(S_CB), s(S_END))); I("s_cbranch_scc1 %s" % L(tag + "_skip"))
    I("s_mov_b32 %s, 0x10000000" % s(S_ST))
    A.L(L(tag + "_loop"))
    A.ext(body(kind, pfkind))
    I("s_cbranch_scc1 %s" % L(tag + "_loop"))
    I("s_mov_b32 %s, %s" % (s(S_STP), s(S_ST)))
    I("s_nop 7")
    A.ext(partB(kind))
    A.L(L(tag + "_skip"))

def gen_p1(name="p1_kernel", timing=False):
    A = Asm(); A.ext(kernel_header(name)); L = lambda x: name + "_" + x; I = A.I
    def stamp(k):
        if timing:
            I("s_memtime s[%d:%d]" % (80 + 2 * k, 81 + 2 * k)); I("s_waitcnt lgkmcnt(0)")
    I("s_cmp_ge_u32 s2, 256"); I("s_cbranch_scc1 %s" % L("end"))
    I("s_load_dwordx2 s[4:5], s[0:1], 112")
    I("s_load_dwordx4 s[56:59], s[0:1], 0")
    I("s_load_dwordx4 s[60:63], s[0:1], 16")
    I("s_load_dwordx2 s[26:27], s[0:1], 32")
    I("s_load_dwordx4 s[64:67], s[0:1], 56")
    I("s_load_dwordx2 s[20:21], s[0:1], 88")
    if timing:
        I("s_memtime s[70:71]"); I("s_memrealtime s[74:75]")
    I("v_lshrrev_b32 v48, 6, v0"); I("v_and_b32 v21, 63, v0"); I("v_lshrrev_b32 v22, 4, v21")
    I("v_readfirstlane_b32 %s, v48" % s(S_WV))
    I("v_lshlrev_b32 %s, 4, v21" % v(V_L16))
    I("s_lshr_b32 %s, s2, 5" % s(S_MB)); I("s_and_b32 s68, s2, 31")
    I("s_waitcnt lgkmcnt(0)")
    I("s_and_b32 s5, s5, 0xffff"); I("s_mov_b32 s6, 0x%x" % WS_BYTES); I("s_mov_b32 s7, 0x00020000")
    I("s_mov_b32 s24, s62"); I("s_and_b32 s25, s63, 0xffff"); I("s_and_b32 s27, s27, 0xffff")
    I("s_and_b32 s21, s21, 0xffff"); I("s_mov_b32 s22, 1024"); I("s_mov_b32 s23, 0x00020000")
    I("s_mov_b32 s16, s66"); I("s_and_b32 s17, s67, 0xffff"); I("s_mov_b32 s18, 2752"); I("s_mov_b32 s19, 0x00020000")
    I("s_mov_b32 s14, 0x200000"); I("s_mov_b32 s15, 0x00020000"); I("s_mov_b32 s11, 0x00020000")
    I("s_cmp_lt_u32 s68, 18"); I("s_cbranch_scc1 %s" % L("role_kv"))
    I("s_cmp_lt_u32 s68, 27"); I("s_cbranch_scc1 %s" % L("role_q"))
    I("s_sub_u32 s68, s68, 27")
    I("s_mul_i32 %s, s68, 9" % s(S_CB)); I("s_sub_u32 s69, s68, 3"); I("s_max_i32 s69, s69, 0"); I("s_sub_u32 %s, %s, s69" % (s(S_CB), s(S_CB)))
    I("s_cmp_ge_u32 s68, 3"); I("s_cselect_b32 %s, 8, 9" % s(S_N))
    I("s_mov_b32 %s, 2" % s(S_KIND))
    I("s_mov_b32 s8, s64"); I("s_and_b32 s9, s65, 0xffff"); I("s_mov_b32 s10, %d" % (512 * 2752))
    I("s_mov_b32 %s, %d" % (s(S_STR16), 16 * 2752))
    I("s_mov_b32 s12, s56"); I("s_and_b32 s13, s57, 0xffff")
    I("s_branch %s" % L("role_j"))
    A.L(L("role_q"))
    I("s_sub_u32 s68, s68, 18")
    I("s_mul_i32 %s, s68, 14" % s(S_CB)); I("s_min_u32 s69, s68, 2"); I("s_add_u32 %s, %s, s69" % (s(S_CB), s(S_CB)))
    I("s_cmp_lt_u32 s68, 2"); I("s_cselect_b32 %s, 15, 14" % s(S_N))
    I("s_mov_b32 %s, 1" % s(S_KIND))
    I("s_mov_b32 s8, s60"); I("s_and_b32 s9, s61, 0xffff"); I("s_mov_b32 s10, 0x400000")
    I("s_mov_b32 %s, %d" % (s(S_STR16), 16 * 8192))
    I("s_mov_b32 s12, s56"); I("s_and_b32 s13, s57, 0xffff")
    I("s_branch %s" % L("role_j"))
    A.L(L("role_kv"))
    I("s_mul_i32 %s, s68, 14" % s(S_CB)); I("s_min_u32 s69, s68, 4"); I("s_add_u32 %s, %s, s69" % (s(S_CB), s(S_CB)))
    I("s_cmp_lt_u32 s68, 4"); I("s_cselect_b32 %s, 15, 14" % s(S_N))
    I("s_mov_b32 %s, 0" % s(S_KIND))
    I("s_mov_b32 s8, s24"); I("s_mov_b32 s9, s25"); I("s_mov_b32 s10, 0x400000")
    I("s_mov_b32 %s, %d" % (s(S_STR16), 16 * 8192))
    I("s_mov_b32 s12, s58"); I("s_and_b32 s13, s59, 0xffff")
    A.L(L("role_j"))
    I("s_lshr_b32 s69, %s, 4" % s(S_STR16))
    I("v_lshrrev_b32 v50, 2, v21"); I("v_mul_lo_u32 v50, v50, s69")
    if OPT.get("wswz"):
        I("v_lshrrev_b32 v51, 5, v21"); I("v_lshlrev_b32 v51, 1, v51"); I("v_and_b32 v52, 3, v21"); I("v_xor_b32 v51, v51, v52")
    else:
        I("v_and_b32 v51, 3, v21")
    I("v_lshlrev_b32 v51, 4, v51"); I("v_add_u32 %s, v50, v51" % v(V_WOFF))
    I("v_lshrrev_b32 v50, 4, v21"); I("v_and_b32 v51, 15, v21")
    I("v_lshlrev_b32 v52, 3, v50"); I("v_lshrrev_b32 v53, 2, v51"); I("v_add_u32 v52, v52, v53"); I("v_lshlrev_b32 v52, 6, v52")
    I("v_bfe_u32 v53, v51, 1, 1")
    if OPT.get("wswz"):
        I("v_and_b32 v54, 1, v50"); I("v_lshlrev_b32 v54, 1, v54"); I("v_xor_b32 v53, v53, v54")
    I("v_lshlrev_b32 v53, 4, v53")
    I("v_add_u32 v52, v52, v53"); I("v_and_b32 v53, 1, v51"); I("v_lshlrev_b32 v53, 3, v53"); I("v_add_u32 %s, v52, v53" % v(V_RB0))
    I("v_xor_b32 %s, 32, %s" % (v(V_RB1), v(V_RB0)))
    I("v_mov_b32 %s, %s" % (v(V_RC0), v(V_RB0))); I("v_mov_b32 %s, %s" % (v(V_RC1), v(V_RB1)))
    I("v_add_u32 %s, 0x8000, %s" % (v(V_RN0), v(V_RB0))); I("v_add_u32 %s, 0x8000, %s" % (v(V_RN1), v(V_RB1)))
    I("v_lshlrev_b32 %s, 3, v50" % v(V_T + 14))
    I("s_mov_b32 %s, %s" % (s(S_PF), s(S_CB)))
    def issue_w(cval, kindreg_dispatch=True):
        I("s_mov_b32 %s, %d" % (s(S_C), cval))
        I("s_cmp_eq_u32 %s, 0" % s(S_KIND)); I("s_cbranch_scc0 %s" % L("pf_o%d" % (cval + 3)))
        A.ext(pf_setup("KV")); I("s_branch %s" % L("pf_j%d" % (cval + 3)))
        A.L(L("pf_o%d" % (cval + 3))); A.ext(pf_setup("O")); A.L(L("pf_j%d" % (cval + 3)))
        pre, dg = dma_w(); A.ext(pre)
        for g in dg: A.ext(g)
    stamp(0)
    I("s_mov_b32 s98, 0"); I("s_mov_b32 s99, 0")
    issue_w(-3)
    stamp(1)
    I("v_lshrrev_b32 v50, 2, v21"); I("v_lshlrev_b32 v50, 10, v50"); I("v_and_b32 v51, 3, v21"); I("v_lshlrev_b32 v51, 4, v51"); I("v_add_u32 v56, v50, v51")
    I("s_lshl_b32 s68, %s, 8" % s(S_MB)); I("s_lshl_b32 s69, %s, 6" % s(S_WV)); I("s_add_u32 s68, s68, s69"); I("s_lshl_b32 s68, s68, 10")
    I("s_lshl_b32 s69, %s, 15" % s(S_WV)); I("s_add_u32 s69, s69, 0x8000")
    I("v_and_b32 v50, 15, v21"); I("v_lshlrev_b32 v51, 6, v50"); I("v_lshlrev_b32 v52, 4, v22"); I("v_add_u32 v58, v51, v52"); I("v_add_u32 v58, s69, v58")
    def xdma(p):
        for sl in range(2):
            for rt in range(4):
                I("s_add_u32 m0, s69, %d" % ((p % 4) * 8192 + sl * 4096 + rt * 1024))
                I("s_add_u32 %s, s68, %d" % (s(S_T0), rt * 16384 + (2 * p + sl) * 64))
                I("buffer_load_dwordx4 v56, %s, %s offen lds" % (s(S_X, 4), s(S_T0)))
    for p in range(4): xdma(p)
    stamp(2)
    for p in range(8):
        younger = min(3, 7 - p) * 8
        I("s_waitcnt vmcnt(%d)" % younger)
        for sl in range(2):
            for rt in range(4):
                I("ds_read_b128 %s, v58 offset:%d" % (X(rt, 2 * p + sl), (p % 4) * 8192 + sl * 4096 + rt * 1024))
        if p + 4 < 8:
            I("s_waitcnt lgkmcnt(0)")
            xdma(p + 4)
    I("s_waitcnt lgkmcnt(0)")
    stamp(3)
    I("s_barrier")
    issue_w(-2); issue_w(-1)
    stamp(4)
    I("s_mov_b32 %s, 0" % s(S_C))
    I("s_add_u32 %s, %s, %s" % (s(S_END), s(S_CB), s(S_N)))
    I("s_lshl_b32 s68, %s, 4" % s(S_MB)); I("s_lshl_b32 s69, %s, 2" % s(S_WV)); I("s_add_u32 s68, s68, s69")
    I("s_cmp_eq_u32 %s, 1" % s(S_KIND)); I("s_cbranch_scc1 %s" % L("run_q"))
    I("s_cmp_eq_u32 %s, 2" % s(S_KIND)); I("s_cbranch_scc1 %s" % L("run_h"))
    I("s_lshl_b32 %s, s68, 13" % s(S_WB)); I("s_add_u32 %s, %s, 0x%x" % (s(S_WB), s(S_WB), KV_OFF))
    def first_reads():
        I("s_waitcnt vmcnt(8)")
        I("s_barrier")
        A.ext(tr_reads(0, False))
    first_reads()
    stamp(5)
    if OPT.get("gt"):
        for k in range(8): I("s_mov_b32 s%d, 0" % (80 + k))
        I("s_memtime s[94:95]"); I("s_waitcnt lgkmcnt(0)")
    I("s_mov_b32 s69, %s" % s(S_END)); I("s_min_u32 %s, %s, 128" % (s(S_END), s(S_END)))
    for rt in range(4): I("v_add_u32 %s, %d, %s" % (v(V_ST + rt), (rt >> 1) * 16384 + (rt & 1) * 4096, v(V_L16)))
    segment(A, L, "K", "KV", "segk")
    I("s_mov_b32 %s, s69" % s(S_END))
    for b in range(2): I("v_add_u32 %s, %d, %s" % (v(V_ST + b), b * 16384, v(V_L16)))
    segment(A, L, "V", "KV", "segv")
    I("s_branch %s" % L("done"))
    A.L(L("run_q"))
    I("s_lshl_b32 %s, s68, 12" % s(S_WB))
    if QF_OFF: I("s_add_u32 %s, %s, 0x%x" % (s(S_WB), s(S_WB), QF_OFF))
    I("s_mov_b32 %s, 0x%x" % (s(S_SC), fbits(QSCALE)))
    for rt in range(4): I("v_add_u32 %s, %d, %s" % (v(V_ST + rt), rt * 4096, v(V_L16)))
    first_reads()
    segment(A, L, "Q", "O", "segq")
    I("s_branch %s" % L("done"))
    A.L(L("run_h"))
    I("s_mul_i32 %s, s68, %d" % (s(S_WB), NSLAB * 1024)); I("s_add_u32 %s, %s, 0x%x" % (s(S_WB), s(S_WB), AM_OFF + 128 * 1024))
    for rt in range(4): I("v_add_u32 %s, %d, %s" % (v(V_ST + rt), rt * NSLAB * 1024, v(V_L16)))
    I("s_mov_b32 %s, 0x%x" % (s(S_C1), fbits(GC1))); I("v_mov_b32 %s, 0x%x" % (v(V_T + 15), fbits(GC0)))
    for r in range(4): I("v_mov_b32 %s, 0x3f803f80" % v(V_ONES + r))
    I("v_lshlrev_b32 v51, 4, v22")
    I("v_and_b32 v52, 8, v21"); I("v_cmp_eq_u32 %s, 0, v52" % s(S_M, 2))
    G = V_H
    for s_ in range(16):
        I("buffer_load_dwordx4 %s, v51, %s, 0 offen offset:%d" % (v(G + 4 * s_, 4), s(S_GW, 4), s_ * 64))
    I("s_waitcnt vmcnt(0)")
    for s_ in range(16):
        for r in range(4):
            I("v_cndmask_b32 %s, %s, %s, %s" % (v(G + 4 * s_ + r), v(G + 4 * s_ + r), v(V_ONES), s(S_M, 2)))
    I("s_nop 1")
    for rt in range(4):
        for s_ in range(16):
            d = v(V_ACC + 4 * rt, 4); I(mf(d, v(G + 4 * s_, 4), X(rt, s_), "0" if s_ == 0 else d))
        for s_ in range(16):
            d = v(V_ACC + 16 + 4 * rt, 4); I(mf(d, X(rt, s_), X(rt, s_), "0" if s_ == 0 else d))
    I("s_nop 7")
    I("v_and_b32 v52, 3, v21")
    for r in range(1, 4): I("v_cmp_eq_u32 %s, %d, v52" % (s(S_M + 2 * r, 2), r))
    I("v_bfe_u32 v53, v21, 2, 2"); I("v_cmp_eq_u32 vcc, v53, v22")
    import gen_p2
    for rt in range(4):
        sq = V_ACC + 16 + 4 * rt; st = V_ACC + 4 * rt
        t0, t1, t2 = v(V_T), v(V_T + 1), v(V_T + 2)
        I("v_mov_b32 %s, %s" % (t0, v(sq)))
        for r in range(1, 4): I("v_cndmask_b32 %s, %s, %s, %s" % (t0, t0, v(sq + r), s(S_M + 2 * r, 2)))
        I("v_cndmask_b32 %s, 0, %s, vcc" % (t0, t0))
        A.ext(gen_p2.xreduce("v_add_f32", t0, t1))
        I("v_mov_b32 %s, %s" % (t1, v(st))); I("v_mov_b32 %s, %s" % (t2, v(st))); I("s_nop 1")
        I("v_permlane32_swap_b32 %s, %s" % (t1, t2))
        I("s_nop 1")
        I("v_mul_f32 %s, 0x%x, %s" % (t1, fbits(1.0 / 512), t1))
        I("v_mul_f32 %s, 0x%x, %s" % (t0, fbits(1.0 / 512), t0))
        I("v_fma_f32 %s, -%s, %s, %s" % (t0, t1, t1, t0))
        I("v_max_f32 %s, 0, %s" % (t0, t0))
        I("v_add_f32 %s, 0x%x, %s" % (t0, fbits(1e-5), t0))
        I("v_rsq_f32 %s, %s" % (v(V_RSTD + rt), t0)); I("s_nop 1")
        I("v_mul_f32 %s, %s, %s" % (v(V_MR + rt), t1, v(V_RSTD + rt)))
        I("v_mul_f32 %s, 0x%x, %s" % (t2, fbits(-math.log2(math.e)), t2))
        I("v_exp_f32 %s, %s" % (t2, t2)); I("s_nop 1"); I("v_add_f32 %s, 1.0, %s" % (t2, t2)); I("v_rcp_f32 %s, %s" % (v(V_T + 4 + rt), t2))
    I("s_cmp_lg_u32 %s, 0" % s(S_CB)); I("s_cbranch_scc1 %s" % L("h_nog"))
    I("v_and_b32 v56, 15, v21"); I("v_lshlrev_b32 v56, 2, v56")
    I("s_lshl_b32 s69, s68, 6"); I("s_add_u32 s69, s69, 0x%x" % G_OFF)
    I("v_cmp_gt_u32 vcc, 16, v21"); I("s_and_saveexec_b64 s[72:73], vcc")
    for rt in range(4): I("buffer_store_dword %s, v56, %s, s69 offen offset:%d" % (v(V_T + 4 + rt), s(S_WS, 4), rt * 64))
    I("s_mov_b64 exec, s[72:73]")
    A.L(L("h_nog"))
    I("s_sub_u32 %s, %s, 1" % (s(S_CB), s(S_CB))); A.ext(b1_loads()); I("s_add_u32 %s, %s, 1" % (s(S_CB), s(S_CB)))
    I("s_waitcnt vmcnt(0)")
    I("s_barrier")
    A.ext(tr_reads(0, False))
    segment(A, L, "H", "O", "segh")
    A.L(L("done"))
    if timing:
        I("s_waitcnt vmcnt(0)")
        I("s_memtime s[72:73]"); I("s_memrealtime s[76:77]"); I("s_waitcnt lgkmcnt(0)")
        I("s_sub_u32 s76, s76, s74"); I("s_sub_u32 s72, s72, s70")
        I("s_lshl_b32 s68, s2, 3"); I("s_add_u32 s68, s68, %s" % s(S_WV)); I("s_lshl_b32 s68, s68, 2"); I("s_add_u32 s68, s68, 0x%x" % (96 << 20))
        I("v_mov_b32 v50, s72"); I("v_mov_b32 v51, 0"); I("buffer_store_dword v50, v51, %s, s68 offen" % s(S_WS, 4))
        I("v_mov_b32 v52, s76"); I("s_add_u32 s68, s68, 0x10000"); I("buffer_store_dword v52, v51, %s, s68 offen" % s(S_WS, 4))
        I("v_mov_b32 v52, s74"); I("s_add_u32 s68, s68, 0x10000"); I("buffer_store_dword v52, v51, %s, s68 offen" % s(S_WS, 4))
        if OPT.get("wt"):
            I("s_add_u32 s88, s98, s70"); I("s_add_u32 s86, s99, s70")
        for k in range(8 if OPT.get("gt") else 0):
            I("v_mov_b32 v52, s%d" % (80 + k)); I("s_add_u32 s68, s68, 0x10000"); I("buffer_store_dword v52, v51, %s, s68 offen" % s(S_WS, 4)); I("s_nop 1")
        for k in range(6 if not OPT.get("gt") else 0):
            I("s_sub_u32 s69, s%d, s70" % (80 + 2 * k)); I("v_mov_b32 v52, s69"); I("s_add_u32 s68, s68, 0x10000"); I("buffer_store_dword v52, v51, %s, s68 offen" % s(S_WS, 4)); I("s_nop 1")
    I("s_waitcnt vmcnt(0)")
    A.L(L("end")); I("s_endpgm")
    return A, kernel_desc(name, 256 + 256, 100, 256)

if __name__ == "__main__":
    import sys
    for a_ in sys.argv[1:]: OPT[a_] = True
    A, desc = gen_p1(timing=True)
    p = Prog(A.lines)
    for e in p.check_hazards(): print(e)
    hdr = "; @launch kernel=p1_kernel grid=(256,1,1) block=(256,1,1) lds=163840\n.amdgcn_target \"amdgcn-amd-amdhsa--gfx950\"\n.text\n"
    open("p1.s", "w").write(hdr + A.text() + ".section .rodata,\"a\"\n.p2align 6\n" + desc + "\n")
    print("instrs:", len(p.ins))
```

```python
from asmlib import *
from layout import *
OPT = {}
TOFF = 96 << 20
V_L16 = 1
V_VA = 2
V_KA = 3
V_L = 4
V_T = 8
V_G = 16
V_THR = 18
V_NEG = 19
V_X = 20
V_Q = 32
V_O = 64
V_SA = 128
V_SB = 144
V_CA = 160
V_CB = 176
V_F = 192
V_P = 224
NV = 232
S_WS = 4
S_T = 8; S_TL = 9; S_NT2 = 10; S_GRP = 11; S_H = 12; S_KVB = 13; S_TMP = 15; S_TMP2 = 16; S_LW = 17; S_TB = 18; S_THR = 19
S_M = 20
S_SOFF = 28

def mf(d, a_, b_, c_):
    c = c_ if isinstance(c_, str) else v(c_, 4)
    return "v_mfma_f32_16x16x32_bf16 %s, %s, %s, %s" % (v(d, 4), v(a_, 4), v(b_, 4), c)
def fr(slot): return V_F + 4 * slot
def rd(slot, base, off): return "ds_read_b128 %s, %s offset:%d" % (v(fr(slot), 4), v(base), off)
def koff(par, kt, s_): return par * 16384 + (kt * 4 + s_) * 1024
def voff(par, dt): return par * 16384 + 8192 + dt * 1024

def period(par, slow_label=None, do_qk=True, do_tree=True, do_kpre=True, kbase_a=None, kbase_pre=None):
    X = V_SA if par == 0 else V_SB
    Y = V_SB if par == 0 else V_SA
    CY = V_CB if par == 0 else V_CA
    npar = 1 - par
    kb_cur = V_VA if par == 0 else V_KA
    if kbase_a is not None: kb_cur = kbase_a
    kb_pre = V_KA if kbase_pre is None else kbase_pre
    x = lambda kt, qt, r: v(X + (kt * 2 + qt) * 4 + r)
    y = lambda kt, qt, r: v(Y + (kt * 2 + qt) * 4 + r)
    ex = lambda kt, qt, r: "v_exp_f32 %s, %s" % (x(kt, qt, r), x(kt, qt, r))
    cv = lambda qt, k: "v_cvt_pk_bf16_f32 %s, %s, %s" % (v(V_P + 4 * qt + k), x(k >> 1, qt, 2 * (k & 1)), x(k >> 1, qt, 2 * (k & 1) + 1))
    ad = lambda kt, qt, r: "v_add_f32 %s, %s, %s" % (v(V_L + 2 * qt + (r & 1)), v(V_L + 2 * qt + (r & 1)), x(kt, qt, r))
    t = lambda i: v(V_T + i)
    m3 = lambda d, a_, b_, c_: "v_max3_f32 %s, %s, %s, %s" % (d, a_, b_, c_)
    A = []
    mA = []
    for kt in range(2):
        for qt in range(2):
            for s_ in range(4):
                d = Y + (kt * 2 + qt) * 4
                mA.append(mf(d, fr(kt * 4 + s_), V_Q + (qt * 4 + s_) * 4, (CY + (kt * 2 + qt) * 4) if s_ == 0 else d))
    exps = [(kt, qt, r) for qt in range(2) for kt in range(2) for r in range(4)]
    FA = [[] for _ in range(16)]
    for n in range(16):
        FA[n].append(ex(*exps[n]))
    FA[3].append(cv(0, 0)); FA[5].append(cv(0, 1)); FA[7].append(cv(0, 2)); FA[9].append(cv(0, 3))
    FA[11].append(cv(1, 0)); FA[13].append(cv(1, 1)); FA[15].append(cv(1, 2))
    tailA = [cv(1, 3)]
    if do_qk:
        for n in range(4):
            FA[2 * n].insert(0, rd(4 + n, kb_cur, koff(npar, 1, n)))
    for n in range(4):
        FA[8 + 2 * n].insert(0, rd(n, V_VA, voff(par, n)))
    for n in range(16):
        A.append((mA[n] if do_qk else None, FA[n]))
    mB = []
    for dt in range(8):
        for qt in range(2):
            d = V_O + (dt * 2 + qt) * 4
            mB.append(mf(d, fr(dt), V_P + 4 * qt, d))
    FB = [[] for _ in range(16)]
    FB[0] = list(tailA)
    adds = [(kt, qt, r) for kt in range(2) for r in range(4) for qt in range(2)]
    for n in range(16): FB[n].append(ad(*adds[n]))
    if do_tree:
        FB[4].append(m3(t(0), y(0, 0, 0), y(0, 0, 1), y(0, 0, 2)))
        FB[5].append(m3(t(1), y(0, 1, 0), y(0, 1, 1), y(0, 1, 2)))
        FB[6].append(m3(t(2), y(0, 0, 3), y(1, 0, 0), y(1, 0, 1)))
        FB[7].append(m3(t(3), y(0, 1, 3), y(1, 1, 0), y(1, 1, 1)))
        FB[8].append(m3(t(0), t(0), y(1, 0, 2), y(1, 0, 3)))
        FB[9].append(m3(t(1), t(1), y(1, 1, 2), y(1, 1, 3)))
        FB[10].append("v_max_f32 %s, %s, %s" % (t(0), t(0), t(2)))
        FB[11].append("v_max_f32 %s, %s, %s" % (t(1), t(1), t(3)))
        FB[12].append("v_max_f32 %s, %s, %s" % (t(2), t(0), t(1)))
        FB[13].append("v_cmp_lt_f32 vcc, %s, %s" % (s(S_THR), t(2)))
    for n in range(4):
        FB[2 * n].insert(0, rd(4 + n, V_VA, voff(par, 4 + n)))
    if do_kpre:
        for n in range(4):
            FB[8 + 2 * n].insert(0, rd(n, kb_pre, koff(par, 0, n)))
    B = [(mB[n], FB[n]) for n in range(16)]
    A[15][1].append(B[0][1].pop(1 if B[0][1][0].startswith("ds_read") else 0))
    if do_tree:
        B[15][1].append("s_cbranch_vccnz %s" % slow_label)
        B[15][1].append(slow_label + "_ret:")
    return A + B

def flatten(groups):
    o = []
    for m, fl in groups:
        if m: o.append(m)
        o.extend(fl)
    return o

def add_waits(stream, pending, look=1):
    out = []; q = list(pending)
    for i, t in enumerate(stream):
        if t.startswith("v_mfma"):
            ins = Ins(t, 0)
            need = [r for r in q if ("v", r) in ins.srcAB]
            if need:
                cover = list(need); cnt = 0
                for t2 in stream[i + 1:]:
                    if t2.startswith("v_mfma"):
                        i2 = Ins(t2, 0)
                        cover += [r for r in q if ("v", r) in i2.srcAB]
                        cnt += 1
                        if cnt >= look: break
                last = max(q.index(r) for r in cover)
                out.append("s_waitcnt lgkmcnt(%d)" % (len(q) - 1 - last))
                q = q[last + 1:]
        if t.startswith("ds_read"):
            q.append(min(r[1] for r in Ins(t, 0).wr))
        out.append(t)
    return out, q

def xreduce(op, reg, tmp):
    return ["v_mov_b32 %s, %s" % (tmp, reg), "s_nop 1", "v_permlane32_swap_b32 %s, %s" % (reg, tmp), "s_nop 1",
            "%s %s, %s, %s" % (op, reg, reg, tmp),
            "v_mov_b32 %s, %s" % (tmp, reg), "s_nop 1", "v_permlane16_swap_b32 %s, %s" % (reg, tmp), "s_nop 1",
            "%s %s, %s, %s" % (op, reg, reg, tmp)]

def slow_path(name, par):
    Y = V_SB if par == 0 else V_SA
    o = [name + ":", "s_nop 15"]
    t = lambda i: v(V_T + i)
    for qt in range(2):
        o += xreduce("v_max_f32", t(qt), t(4))
        o += ["v_max_f32 %s, 0, %s" % (t(qt), t(qt)), "v_sub_f32 %s, 0, %s" % (t(2 + qt), t(qt)),
              "v_exp_f32 %s, %s" % (t(2 + qt), t(2 + qt)), "s_nop 1"]
    for dt in range(8):
        for qt in range(2):
            for r in range(4):
                x = v(V_O + (dt * 2 + qt) * 4 + r)
                o.append("v_mul_f32 %s, %s, %s" % (x, x, t(2 + qt)))
    for qt in range(2):
        for k in range(2):
            o.append("v_mul_f32 %s, %s, %s" % (v(V_L + 2 * qt + k), v(V_L + 2 * qt + k), t(2 + qt)))
    for kt in range(2):
        for qt in range(2):
            for r in range(4):
                i = (kt * 2 + qt) * 4 + r
                for b in (Y, V_CA, V_CB):
                    o.append("v_sub_f32 %s, %s, %s" % (v(b + i), v(b + i), t(qt)))
    o += ["s_nop 1", "s_branch %s_ret" % name]
    return o

def mask_block(b):
    C = V_CA if b == 0 else V_CB
    items = []
    for kt in range(2):
        for qt in range(2):
            for r in range(4):
                items.append((C + (kt * 2 + qt) * 4 + r, 32 * b + 16 * kt + r - 16 * qt))
    o = []
    for g in range(0, 16, 4):
        for k in range(4):
            o.append("v_cmp_le_i32 %s, %d, %s" % (s(S_M + 2 * k, 2), items[g + k][1], v(V_THR)))
        for k in range(4):
            o.append("v_cndmask_b32 %s, %s, %s, %s" % (v(items[g + k][0]), v(V_NEG), v(items[g + k][0]), s(S_M + 2 * k, 2)))
    o.append("s_nop 1")
    return o

def dma_block():
    o = []
    o.append("s_add_u32 %s, %s, 3" % (s(S_TMP), s(S_T)))
    o.append("s_lshl_b32 %s, %s, 15" % (s(S_SOFF), s(S_TMP)))
    if OPT.get("sametile"): o.append("s_and_b32 %s, %s, 0x18000" % (s(S_SOFF), s(S_SOFF)))
    o.append("s_add_u32 %s, %s, %s" % (s(S_SOFF), s(S_SOFF), s(S_KVB)))
    o.append("s_and_b32 %s, %s, 3" % (s(S_TMP), s(S_TMP)))
    o.append("s_lshl_b32 %s, %s, 15" % (s(S_TMP), s(S_TMP)))
    o.append("s_lshl_b32 %s, %s, 13" % (s(S_TMP2), s(S_LW)))
    o.append("s_add_u32 m0, %s, %s" % (s(S_TMP), s(S_TMP2)))
    o.append("s_nop 0")
    for k in range(4):
        o.append("buffer_load_dwordx4 %s, %s, %s offen offset:%d lds" % (v(V_L16), s(S_WS, 4), s(S_SOFF), k * 1024))
    o.append("s_add_u32 m0, m0, 4096")
    o.append("s_add_u32 %s, %s, 4096" % (s(S_SOFF), s(S_SOFF)))
    for k in range(4):
        o.append("buffer_load_dwordx4 %s, %s, %s offen offset:%d lds" % (v(V_L16), s(S_WS, 4), s(S_SOFF), k * 1024))
    return o

PEND0 = [fr(0), fr(1), fr(2), fr(3)]
def body_stream(u):
    b = flatten(period(0, slow_label=u + "_sA")) + flatten(period(1, slow_label=u + "_sB"))
    b, p1 = add_waits(b, PEND0)
    assert p1 == PEND0, p1
    return b
def advance():
    return ["s_add_u32 %s, %s, 1" % (s(S_T), s(S_T)),
            "s_add_u32 %s, %s, 1" % (s(S_TMP), s(S_T)),
            "s_and_b32 %s, %s, 3" % (s(S_TMP), s(S_TMP)),
            "s_lshl_b32 %s, %s, 15" % (s(S_TMP), s(S_TMP)),
            "v_mov_b32 %s, %s" % (v(V_VA), v(V_KA)),
            "v_add_u32 %s, %s, %s" % (v(V_KA), s(S_TMP), v(V_L16))]

def main_part(A, L, lo, slows):
    I = A.I
    r = "lo" if lo else "hi"
    top = ["s_waitcnt vmcnt(8)", "s_barrier"] if lo else ["s_barrier"]
    if lo: top += dma_block()
    I("s_cmp_eq_u32 %s, 0" % s(S_TL)); I("s_cbranch_scc1 %s" % L(r + "_final"))
    I("s_cmp_eq_u32 %s, 1" % s(S_TL)); I("s_cbranch_scc1 %s" % L(r + "_peel"))
    I("s_sub_u32 %s, %s, 1" % (s(29), s(S_TL)))
    A.L(L(r + "_loop"))
    A.ext(top)
    A.ext(body_stream(L(r + "_l")))
    slows += [(L(r + "_l_sA"), 0), (L(r + "_l_sB"), 1)]
    A.ext(advance())
    I("s_cmp_lt_u32 %s, %s" % (s(S_T), s(29)))
    I("s_cbranch_scc1 %s" % L(r + "_loop"))
    A.L(L(r + "_peel"))
    A.ext(top)
    A.ext(mask_block(0))
    A.ext(body_stream(L(r + "_p")))
    slows += [(L(r + "_p_sA"), 0), (L(r + "_p_sB"), 1)]
    A.ext(advance())
    A.L(L(r + "_final"))
    if lo:
        A.ext(top)
    else:
        I("s_cmp_gt_u32 %s, %s" % (s(S_T), s(S_NT2)))
        I("s_cbranch_scc1 %s" % L(r + "_final_nobar"))
        I("s_barrier")
        A.L(L(r + "_final_nobar"))
    A.ext(mask_block(1))
    fin = flatten(period(0, slow_label=L(r + "_f_sA"), do_kpre=False)) + flatten(period(1, do_qk=False, do_tree=False, do_kpre=False))
    fin, p2 = add_waits(fin, PEND0)
    assert p2 == [], p2
    slows += [(L(r + "_f_sA"), 0)]
    A.ext(fin)
    I("s_nop 7")
    for qt in range(2):
        l0 = v(V_L + 2 * qt)
        I("v_add_f32 %s, %s, %s" % (l0, l0, v(V_L + 2 * qt + 1)))
        A.ext(xreduce("v_add_f32", l0, v(V_T)))
        I("v_rcp_f32 %s, %s" % (l0, l0)); I("s_nop 1")
    for qt in range(2):
        I("s_lshl_b32 s36, %s, 1" % s(S_TB))
        if qt: I("s_add_u32 s36, s36, 1")
        I("s_mul_i32 s36, s36, %d" % NSLAB)
        I("s_lshl_b32 s37, %s, 2" % s(S_H))
        I("s_add_u32 s36, s36, s37")
        I("s_lshl_b32 s36, s36, 10")
        I("s_add_u32 s36, s36, 0x%x" % AM_OFF)
        for s_ in range(4):
            dst = V_F + 4 * (qt * 4 + s_)
            for half in range(2):
                base = V_O + ((2 * s_ + half) * 2 + qt) * 4
                for r_ in range(4):
                    I("v_mul_f32 %s, %s, %s" % (v(base + r_), v(base + r_), v(V_L + 2 * qt)))
                for k in range(2):
                    I("v_cvt_pk_bf16_f32 %s, %s, %s" % (v(dst + 2 * half + k), v(base + 2 * k), v(base + 2 * k + 1)))
            I("buffer_store_dwordx4 %s, %s, %s, s36 offen offset:%d" % (v(dst, 4), v(V_L16), s(S_WS, 4), s_ * 1024))
    if lo:
        A.L(L("ldloop"))
        I("s_add_u32 %s, %s, 1" % (s(S_T), s(S_T)))
        I("s_cmp_gt_u32 %s, %s" % (s(S_T), s(S_NT2)))
        I("s_cbranch_scc1 %s" % L("done"))
        I("s_waitcnt vmcnt(8)")
        I("s_barrier")
        A.ext(dma_block())
        I("s_branch %s" % L("ldloop"))
    else:
        I("s_branch %s" % L("done"))

def gen_p2(name="p2_kernel", timing=False):
    A = Asm()
    A.ext(kernel_header(name))
    L = lambda x: name + "_" + x
    I = A.I
    I("s_cmp_ge_u32 s2, 256")
    I("s_cbranch_scc1 %s" % L("end"))
    I("s_load_dwordx2 s[4:5], s[0:1], 112")
    if timing:
        I("s_memtime s[44:45]")
        I("s_memrealtime s[48:49]")
    I("v_lshrrev_b32 v20, 6, v0")
    I("v_and_b32 v21, 63, v0")
    I("v_readfirstlane_b32 s38, v20")
    I("v_lshlrev_b32 %s, 4, v21" % v(V_L16))
    I("s_and_b32 s30, s2, 7")
    I("s_lshr_b32 s31, s2, 3")
    I("s_and_b32 s32, s31, 3")
    I("s_lshl_b32 %s, s30, 2" % s(S_H))
    I("s_add_u32 %s, %s, s32" % (s(S_H), s(S_H)))
    I("s_lshr_b32 s33, s2, 5")
    I("s_lshr_b32 %s, s38, 2" % s(S_GRP))
    I("s_and_b32 %s, s38, 3" % s(S_LW))
    I("s_sub_u32 s34, 15, s33")
    I("s_sub_u32 s35, 3, %s" % s(S_LW))
    I("s_cmp_eq_u32 %s, 0" % s(S_GRP))
    I("s_cselect_b32 s34, s34, s33")
    I("s_cselect_b32 s35, %s, s35" % s(S_LW))
    I("s_lshl_b32 %s, s34, 2" % s(S_TB))
    I("s_add_u32 %s, %s, s35" % (s(S_TB), s(S_TB)))
    I("s_lshr_b32 s36, s35, 1")
    I("s_lshl_b32 %s, s34, 1" % s(S_TL))
    I("s_add_u32 %s, %s, s36" % (s(S_TL), s(S_TL)))
    I("s_lshl_b32 s36, s33, 1")
    I("s_sub_u32 %s, 30, s36" % s(S_NT2))
    I("s_mov_b32 %s, 0x%x" % (s(S_THR), 0x41000000))
    I("s_waitcnt lgkmcnt(0)")
    I("s_and_b32 s5, s5, 0xffff")
    I("s_mov_b32 s6, 0x%x" % WS_BYTES)
    I("s_mov_b32 s7, 0x00020000")
    I("s_lshl_b32 %s, %s, 20" % (s(S_KVB), s(S_H)))
    I("s_add_u32 %s, %s, 0x%x" % (s(S_KVB), s(S_KVB), KV_OFF))
    I("s_lshl_b32 s36, %s, 13" % s(S_LW))
    I("s_add_u32 %s, %s, s36" % (s(S_KVB), s(S_KVB)))
    I("s_lshl_b32 s36, %s, 6" % s(S_H))
    I("s_add_u32 s36, s36, %s" % s(S_TB))
    I("s_lshl_b32 s36, s36, 13")
    if QF_OFF: I("s_add_u32 s36, s36, 0x%x" % QF_OFF)
    for k in range(4):
        I("buffer_load_dwordx4 %s, %s, %s, s36 offen offset:%d" % (v(V_Q + 4 * k, 4), v(V_L16), s(S_WS, 4), k * 1024))
    I("s_add_u32 s36, s36, 4096")
    for k in range(4):
        I("buffer_load_dwordx4 %s, %s, %s, s36 offen offset:%d" % (v(V_Q + 16 + 4 * k, 4), v(V_L16), s(S_WS, 4), k * 1024))
    I("v_and_b32 v22, 15, v21")
    I("s_lshl_b32 s36, %s, 5" % s(S_TB))
    I("s_lshl_b32 s37, %s, 6" % s(S_TL))
    I("s_sub_u32 s36, s36, s37")
    I("v_lshrrev_b32 v23, 4, v21")
    I("v_lshlrev_b32 v23, 2, v23")
    I("v_sub_u32 v22, v22, v23")
    I("v_add_u32 %s, s36, v22" % v(V_THR))
    I("v_mov_b32 %s, 0xf149f2ca" % v(V_NEG))
    for r in range(64): I("v_mov_b32 %s, 0" % v(V_O + r))
    for r in range(32): I("v_mov_b32 %s, 0" % v(V_CA + r))
    for r in range(4): I("v_mov_b32 %s, 0" % v(V_L + r))
    I("v_mov_b32 %s, %s" % (v(V_VA), v(V_L16)))
    I("v_add_u32 %s, 0x8000, %s" % (v(V_KA), v(V_L16)))
    I("s_cmp_eq_u32 %s, 0" % s(S_GRP))
    I("s_cbranch_scc1 %s" % L("pro_hi"))
    for t in (-3, -2, -1):
        I("s_mov_b32 %s, %d" % (s(S_T), t))
        A.ext(dma_block())
    I("s_waitcnt vmcnt(16)")
    I("s_branch %s" % L("pro_j"))
    A.L(L("pro_hi"))
    I("s_waitcnt vmcnt(0)")
    A.L(L("pro_j"))
    I("s_mov_b32 %s, 0" % s(S_T))
    I("s_barrier")
    I("s_cmp_lg_u32 %s, 0" % s(S_TL))
    I("s_cbranch_scc1 %s" % L("pro_nomask"))
    A.ext(mask_block(0))
    A.L(L("pro_nomask"))
    for kt in range(2):
        for s_ in range(4):
            I(rd(kt * 4 + s_, V_VA, koff(0, kt, s_)))
    I("s_waitcnt lgkmcnt(0)")
    for kt in range(2):
        for qt in range(2):
            for s_ in range(4):
                d = V_SA + (kt * 2 + qt) * 4
                I(mf(d, fr(kt * 4 + s_), V_Q + (qt * 4 + s_) * 4, (V_CA + (kt * 2 + qt) * 4) if s_ == 0 else d))
    for s_ in range(4):
        I(rd(s_, V_VA, koff(1, 0, s_)))
    I("s_nop 7")
    t = lambda i: v(V_T + i)
    y = lambda kt, qt, r: v(V_SA + (kt * 2 + qt) * 4 + r)
    for qt in range(2):
        I("v_max3_f32 %s, %s, %s, %s" % (t(qt), y(0, qt, 0), y(0, qt, 1), y(0, qt, 2)))
        I("v_max3_f32 %s, %s, %s, %s" % (t(2), y(0, qt, 3), y(1, qt, 0), y(1, qt, 1)))
        I("v_max3_f32 %s, %s, %s, %s" % (t(qt), t(qt), y(1, qt, 2), y(1, qt, 3)))
        I("v_max_f32 %s, %s, %s" % (t(qt), t(qt), t(2)))
        A.ext(xreduce("v_max_f32", t(qt), t(4)))
    for kt in range(2):
        for qt in range(2):
            for r in range(4):
                i = (kt * 2 + qt) * 4 + r
                for b in (V_SA, V_CA, V_CB):
                    I("v_sub_f32 %s, %s, %s" % (v(b + i), v(b + i), t(qt)))
    I("s_nop 1")
    slows = []
    I("s_cmp_eq_u32 %s, 0" % s(S_GRP))
    I("s_cbranch_scc0 %s" % L("lo_main"))
    main_part(A, L, False, slows)
    A.L(L("lo_main"))
    main_part(A, L, True, slows)
    A.L(L("done"))
    if timing:
        I("s_waitcnt vmcnt(0)")
        I("s_memtime s[46:47]")
        I("s_memrealtime s[50:51]")
        I("s_waitcnt lgkmcnt(0)")
        I("s_sub_u32 s50, s50, s48")
        I("s_sub_u32 s46, s46, s44")
        I("s_lshl_b32 s36, s2, 3")
        I("s_add_u32 s36, s36, s38")
        I("s_lshl_b32 s36, s36, 2")
        I("s_add_u32 s36, s36, 0x%x" % (96 << 20))
        I("v_mov_b32 v20, s46")
        I("v_mov_b32 v21, 0")
        I("buffer_store_dword v20, v21, %s, s36 offen" % s(S_WS, 4))
        I("v_mov_b32 v22, s50")
        I("s_add_u32 s36, s36, 0x10000")
        I("buffer_store_dword v22, v21, %s, s36 offen" % s(S_WS, 4))
        I("v_mov_b32 v22, s48")
        I("s_add_u32 s36, s36, 0x10000")
        I("buffer_store_dword v22, v21, %s, s36 offen" % s(S_WS, 4))
    I("s_waitcnt vmcnt(0)")
    A.L(L("end"))
    I("s_endpgm")
    for nm, par in slows:
        A.ext(slow_path(nm, par))
    return A, kernel_desc(name, NV, 64, NV)

if __name__ == "__main__":
    import sys
    for a_ in sys.argv[1:]: OPT[a_] = True
    A, desc = gen_p2(timing=True)
    p = Prog(A.lines)
    errs = p.check_hazards()
    for e in errs: print(e)
    hdr = "; @launch kernel=p2_kernel grid=(256,1,1) block=(512,1,1) lds=131072\n.amdgcn_target \"amdgcn-amd-amdhsa--gfx950\"\n.text\n"
    open("p2.s", "w").write(hdr + A.text() + ".section .rodata,\"a\"\n.p2align 6\n" + desc + "\n")
    print("instrs:", len(p.ins))
```

```python
from asmlib import *
from layout import *
import gen_p2
OPT = {}
V_L16 = 1; V_WOFF = 2; V_RA = 3
V_LANE = 7; V_G4 = 8; V_T = 9
V_ACC = 32
V_W = 96
V_A = 128
NV = 192
S_WS = 4; S_W = 8; S_OUT = 12; S_B2 = 16
S_WV = 20; S_TM = 21; S_TN = 22; S_S = 23; S_END = 24; S_AO = 25; S_WO = 26; S_T0 = 27; S_T1 = 28; S_LB = 29
RING = 4
def acc(ct, tt): return V_ACC + (ct * 4 + tt) * 4
def loads(slot):
    o = []
    for tt in range(4):
        o.append("buffer_load_dwordx4 %s, %s, %s, %s offen" % (v(V_A + slot * 16 + tt * 4, 4), v(V_T + tt), s(S_WS, 4), s(S_AO)))
    o.append("s_add_u32 m0, %s, %d" % (s(S_LB), slot * 4096))
    o.append("s_add_u32 %s, %s, %d" % (s(S_AO), s(S_AO), 0 if OPT.get("same") or OPT.get("sameA") else 1024))
    for q in range(4):
        o.append("buffer_load_dwordx4 %s, %s, %s offen lds" % (v(V_WOFF), s(S_W, 4), s(S_WO)))
        if q < 3: o.append("s_add_u32 m0, m0, 1024")
        o.append("s_add_u32 %s, %s, %d" % (s(S_WO), s(S_WO), (8192 if q < 3 else -24576) if OPT.get("same") or OPT.get("sameW") else 8192))
    if OPT.get("noA"): o = [x for x in o if not (x.startswith("buffer_load") and not x.endswith("lds"))]
    if OPT.get("noW"): o = [x for x in o if not (x.startswith("buffer_load") and x.endswith("lds"))]
    return o
def trs(slot, wb):
    o = []
    for ct in range(4):
        for h in range(2):
            o.append("ds_read_b64_tr_b16 %s, %s offset:%d" % (v(V_W + wb * 16 + ct * 4 + 2 * h, 2), v(V_RA + ct), slot * 4096 + h * 2048))
    return o
def mfmas(slot, wb, first=False):
    o = []
    for tt in range(4):
        for ct in range(4):
            d = v(acc(ct, tt), 4)
            o.append("v_mfma_f32_16x16x32_bf16 %s, %s, %s, %s" % (d, v(V_W + wb * 16 + ct * 4, 4), v(V_A + slot * 16 + tt * 4, 4), d))
    return o

def gen_p3(name="p3_kernel", timing=False):
    A = Asm(); A.ext(kernel_header(name)); L = lambda x: name + "_" + x; I = A.I
    I("s_cmp_ge_u32 s2, 256"); I("s_cbranch_scc1 %s" % L("end"))
    I("s_load_dwordx2 s[4:5], s[0:1], 112")
    I("s_load_dwordx2 s[30:31], s[0:1], 40")
    I("s_load_dwordx4 s[32:35], s[0:1], 72")
    I("s_load_dwordx2 s[12:13], s[0:1], 96")
    if timing:
        I("s_memtime s[40:41]"); I("s_memrealtime s[44:45]")
    I("v_lshrrev_b32 v9, 6, v0"); I("v_and_b32 %s, 63, v0" % v(V_LANE))
    I("v_readfirstlane_b32 %s, v9" % s(S_WV))
    I("v_lshlrev_b32 %s, 4, %s" % (v(V_L16), v(V_LANE))); I("v_lshrrev_b32 %s, 4, %s" % (v(V_G4), v(V_LANE)))
    I("s_and_b32 %s, s2, 31" % s(S_TM)); I("s_lshr_b32 %s, s2, 5" % s(S_TN))
    I("s_waitcnt lgkmcnt(0)")
    I("s_and_b32 s5, s5, 0xffff"); I("s_mov_b32 s6, 0x%x" % WS_BYTES); I("s_mov_b32 s7, 0x00020000")
    I("s_and_b32 s13, s13, 0xffff"); I("s_mov_b32 s14, 0x200000"); I("s_mov_b32 s15, 0x00020000")
    I("s_mov_b32 s16, s34"); I("s_and_b32 s17, s35, 0xffff"); I("s_mov_b32 s18, 1024"); I("s_mov_b32 s19, 0x00020000")
    I("s_mov_b32 s11, 0x00020000")
    I("s_cmp_ge_u32 %s, 6" % s(S_WV)); I("s_cbranch_scc1 %s" % L("hwave"))
    I("s_mul_i32 %s, %s, 21" % (s(S_S), s(S_WV))); I("s_min_u32 %s, %s, 2" % (s(S_T0), s(S_WV))); I("s_add_u32 %s, %s, %s" % (s(S_S), s(S_S), s(S_T0)))
    I("s_cmp_lt_u32 %s, 2" % s(S_WV)); I("s_cselect_b32 %s, 22, 21" % s(S_END))
    I("s_mov_b32 s8, s30"); I("s_and_b32 s9, s31, 0xffff"); I("s_mov_b32 s10, 0x400000")
    I("s_lshl_b32 %s, %s, 15" % (s(S_WO), s(S_S)))
    I("s_branch %s" % L("wj"))
    A.L(L("hwave"))
    I("s_sub_u32 %s, %s, 6" % (s(S_T0), s(S_WV))); I("s_mul_i32 %s, %s, 22" % (s(S_S), s(S_T0)))
    I("s_sub_u32 %s, 22, %s" % (s(S_END), s(S_T0)))
    I("s_mov_b32 s8, s32"); I("s_and_b32 s9, s33, 0xffff"); I("s_mov_b32 s10, %d" % (1376 * 1024))
    I("s_lshl_b32 %s, %s, 15" % (s(S_WO), s(S_S)))
    I("s_add_u32 %s, %s, 128" % (s(S_S), s(S_S)))
    A.L(L("wj"))
    I("s_lshl_b32 %s, %s, 7" % (s(S_T0), s(S_TN))); I("s_add_u32 %s, %s, %s" % (s(S_WO), s(S_WO), s(S_T0)))
    I("s_mul_i32 %s, %s, %d" % (s(S_AO), s(S_TM), 4 * NSLAB)); I("s_add_u32 %s, %s, %s" % (s(S_AO), s(S_AO), s(S_S)))
    I("s_lshl_b32 %s, %s, 10" % (s(S_AO), s(S_AO))); I("s_add_u32 %s, %s, 0x%x" % (s(S_AO), s(S_AO), AM_OFF))
    for tt in range(4): I("v_add_u32 %s, %d, %s" % (v(V_T + tt), tt * NSLAB * 1024, v(V_L16)))
    I("s_lshl_b32 %s, %s, 14" % (s(S_LB), s(S_WV)))
    I("v_lshrrev_b32 v16, 3, %s" % v(V_LANE)); I("v_lshlrev_b32 v16, 10, v16"); I("v_and_b32 v17, 7, %s" % v(V_LANE))
    I("v_lshlrev_b32 v18, 1, %s" % v(V_G4)); I("v_xor_b32 v17, v17, v18"); I("v_lshlrev_b32 v17, 4, v17"); I("v_add_u32 %s, v16, v17" % v(V_WOFF))
    I("v_and_b32 v16, 15, %s" % v(V_LANE)); I("v_lshrrev_b32 v17, 2, v16"); I("v_lshlrev_b32 v18, 2, %s" % v(V_G4)); I("v_add_u32 v17, v17, v18")
    I("v_bfe_u32 v18, v17, 1, 2"); I("v_lshlrev_b32 v18, 5, v18"); I("v_lshlrev_b32 v17, 7, v17"); I("v_add_u32 v17, v17, v18")
    I("v_and_b32 v18, 3, v16"); I("v_lshlrev_b32 v18, 3, v18"); I("v_add_u32 v17, v17, v18")
    I("v_add_u32 v17, %s, v17" % s(S_LB))
    for ct in range(4): I("v_xor_b32 %s, %d, v17" % (v(V_RA + ct), ct << 5))
    for r in range(64): I("v_mov_b32 %s, 0" % v(V_ACC + r))
    for k in range(3): A.ext(loads(k))
    I("s_waitcnt vmcnt(16)")
    A.ext(trs(0, 0))
    I("s_mov_b32 %s, 0" % s(S_S))
    if timing: I("s_memtime s[48:49]")
    A.L(L("loop"))
    for k in range(4):
        ld = loads((k + 3) % 4)
        m = mfmas(k, k & 1)
        tr = trs((k + 1) % 4, (k + 1) & 1)
        o = ["s_waitcnt lgkmcnt(0)"]
        li = 0
        for n_, x in enumerate(m):
            o.append(x)
            if n_ < 8:
                take = 2
                o += ld[li:li + take]; li += take
            if n_ == 7:
                o += ld[li:]; li = len(ld)
                o.append("s_waitcnt vmcnt(16)")
            if n_ >= 8:
                o.append(tr[n_ - 8])
        A.ext(o)
        I("s_add_u32 %s, %s, 1" % (s(S_S), s(S_S)))
        I("s_cmp_ge_u32 %s, %s" % (s(S_S), s(S_END)))
        if k < 3: I("s_cbranch_scc1 %s" % L("loopend"))
        else: I("s_cbranch_scc0 %s" % L("loop"))
    A.L(L("loopend"))
    if timing: I("s_memtime s[50:51]")
    I("s_waitcnt vmcnt(0) lgkmcnt(0)")
    I("s_nop 7")
    I("v_add_u32 v16, %s, %s" % (s(S_LB), v(V_L16)))
    for t_ in range(16):
        I("ds_write_b128 v16, %s offset:%d" % (v(V_ACC + 4 * t_, 4), t_ * 1024))
        if t_ == 7: I("s_waitcnt lgkmcnt(2)")
    I("s_lshr_b32 %s, %s, 1" % (s(S_T0), s(S_WV))); I("s_and_b32 %s, %s, 1" % (s(S_T1), s(S_WV)))
    I("v_and_b32 v17, 15, %s" % v(V_LANE)); I("v_lshlrev_b32 v18, 2, v17")
    I("s_lshl_b32 s36, %s, 2" % s(S_TM)); I("s_add_u32 s36, s36, %s" % s(S_T0)); I("s_lshl_b32 s37, s36, 6"); I("s_add_u32 s37, s37, 0x%x" % G_OFF)
    I("buffer_load_dword v20, v18, %s, s37 offen" % s(S_WS, 4))
    I("v_lshlrev_b32 v19, 3, %s" % v(V_G4))
    I("s_lshl_b32 s38, %s, 7" % s(S_TN)); I("s_lshl_b32 s39, %s, 6" % s(S_T1)); I("s_add_u32 s38, s38, s39")
    I("buffer_load_dwordx2 v[22:23], v19, %s, s38 offen" % s(S_B2, 4))
    I("buffer_load_dwordx2 v[24:25], v19, %s, s38 offen offset:32" % s(S_B2, 4))
    I("s_waitcnt lgkmcnt(0)")
    I("s_barrier")
    if timing: I("s_memtime s[52:53]")
    I("s_lshl_b32 s39, %s, 13" % s(S_T1)); I("s_lshl_b32 s37, %s, 10" % s(S_T0)); I("s_add_u32 s39, s39, s37")
    I("v_add_u32 v16, s39, %s" % v(V_L16)); I("v_add_u32 v26, 0x10000, v16")
    P = V_ACC
    for c in range(2):
        for w in range(8):
            base = "v16" if w < 4 else "v26"
            I("ds_read_b128 %s, %s offset:%d" % (v(P + (c * 8 + w) * 4, 4), base, (w & 3) * 16384 + c * 4096))
        if c == 0: I("s_waitcnt lgkmcnt(0)")
    I("s_waitcnt vmcnt(0) lgkmcnt(0)")
    I("v_lshlrev_b32 v18, 10, v17"); I("v_add_u32 v18, v18, v19")
    I("s_lshl_b32 s37, s36, 14"); I("s_add_u32 s37, s37, s38")
    I("v_sub_f32 v21, 1.0, v20")
    for c in range(2):
        b = P + c * 32
        B2 = 22 + 2 * c
        I("v_lshlrev_b32 v28, 16, v%d" % B2); I("v_and_b32 v29, 0xffff0000, v%d" % B2)
        I("v_lshlrev_b32 v30, 16, v%d" % (B2 + 1)); I("v_and_b32 v31, 0xffff0000, v%d" % (B2 + 1))
        for r in range(4):
            for w in range(1, 6): I("v_add_f32 %s, %s, %s" % (v(b + r), v(b + r), v(b + 4 * w + r)))
            I("v_add_f32 %s, %s, %s" % (v(b + 24 + r), v(b + 24 + r), v(b + 28 + r)))
            I("v_add_f32 %s, %s, v%d" % (v(b + 24 + r), v(b + 24 + r), 28 + r))
            I("v_mul_f32 %s, %s, v21" % (v(b + 24 + r), v(b + 24 + r)))
            I("v_fma_f32 %s, %s, v20, %s" % (v(b + r), v(b + r), v(b + 24 + r)))
        I("v_cvt_pk_bf16_f32 %s, %s, %s" % (v(b + 4), v(b), v(b + 1)))
        I("v_cvt_pk_bf16_f32 %s, %s, %s" % (v(b + 5), v(b + 2), v(b + 3)))
        I("buffer_store_dwordx2 %s, v18, %s, s37 offen offset:%d" % (v(b + 4, 2), s(S_OUT, 4), c * 32))
    if timing:
        I("s_waitcnt vmcnt(0)")
        I("s_memtime s[42:43]"); I("s_memrealtime s[46:47]"); I("s_waitcnt lgkmcnt(0)")
        I("s_sub_u32 s46, s46, s44"); I("s_sub_u32 s42, s42, s40")
        I("s_lshl_b32 s36, s2, 3"); I("s_add_u32 s36, s36, %s" % s(S_WV)); I("s_lshl_b32 s36, s36, 2"); I("s_add_u32 s36, s36, 0x%x" % (96 << 20))
        I("v_mov_b32 v16, s42"); I("v_mov_b32 v17, 0"); I("buffer_store_dword v16, v17, %s, s36 offen" % s(S_WS, 4))
        I("v_mov_b32 v18, s46"); I("s_add_u32 s36, s36, 0x10000"); I("buffer_store_dword v18, v17, %s, s36 offen" % s(S_WS, 4))
        I("v_mov_b32 v18, s44"); I("s_add_u32 s36, s36, 0x10000"); I("buffer_store_dword v18, v17, %s, s36 offen" % s(S_WS, 4))
        for k in range(3):
            I("s_sub_u32 s39, s%d, s40" % (48 + 2 * k)); I("v_mov_b32 v18, s39"); I("s_add_u32 s36, s36, 0x10000"); I("buffer_store_dword v18, v17, %s, s36 offen" % s(S_WS, 4)); I("s_nop 1")
    I("s_waitcnt vmcnt(0)")
    A.L(L("end")); I("s_endpgm")
    return A, kernel_desc(name, NV, 64, NV)

if __name__ == "__main__":
    import sys
    for a_ in sys.argv[1:]: OPT[a_] = True
    A, desc = gen_p3(timing=True)
    p = Prog(A.lines)
    for e in p.check_hazards(): print(e)
    hdr = "; @launch kernel=p3_kernel grid=(256,1,1) block=(512,1,1) lds=131072\n.amdgcn_target \"amdgcn-amd-amdhsa--gfx950\"\n.text\n"
    open("p3.s", "w").write(hdr + A.text() + ".section .rodata,\"a\"\n.p2align 6\n" + desc + "\n")
    print("instrs:", len(p.ins))
```

```python
import sys, importlib
sys.path.insert(0, "dev")
from asmlib import *
import gen_p1, gen_p2
import gen_p3b as gen_p3
NAME = "gated_mix__compressed_kv_cla__mixer_channel_mlp__prompt"
def build(timing=False, out=None):
    ref = open("cdna_kernels/%s.s.ref" % NAME).read()
    head = [l for l in ref.split("\n") if l.startswith(";") and "@launch" not in l and "Override launch" not in l and "grid=ceil" not in l]
    parts = []; descs = []
    for gen, nm in ((gen_p1.gen_p1, "p1_kernel"), (gen_p2.gen_p2, "p2_kernel"), (gen_p3.gen_p3, "p3_kernel")):
        A, d = gen(name=nm, timing=timing)
        p = Prog(A.lines)
        errs = p.check_hazards()
        for e in errs: print(e)
        assert not errs
        parts.append(A.text()); descs.append(d)
    txt = "\n".join(head) + "\n"
    txt += "; @launch kernel=p1_kernel grid=(256,1,1) block=(256,1,1) lds=163840\n"
    txt += "; @launch kernel=p2_kernel grid=(256,1,1) block=(512,1,1) lds=131072\n"
    txt += "; @launch kernel=p3_kernel grid=(256,1,1) block=(512,1,1) lds=131072\n"
    txt += ".amdgcn_target \"amdgcn-amd-amdhsa--gfx950\"\n.text\n" + "\n".join(parts)
    txt += ".section .rodata,\"a\"\n" + "".join(".p2align 6\n" + d + "\n" for d in descs)
    open(out or "cdna_kernels/%s.s" % NAME, "w").write(txt)
    print("written", len(txt), "bytes")
if __name__ == "__main__":
    build(timing=False)
    build(timing=True, out="full_t.s")
```

```python
from asmlib import *
from layout import *
import math, struct
OPT = {}
TOFF = 96 << 20
def fbits(x): return struct.unpack("<I", struct.pack("<f", x))[0]
QSCALE = math.log2(math.e) / math.sqrt(128.0)
GC0 = -2.0 * math.log2(math.e) * math.sqrt(2.0 / math.pi)
GC1 = GC0 * 0.044715
V_L16 = 1; V_WOFF = 2; V_RC0 = 3; V_RC1 = 4; V_RN0 = 5; V_RN1 = 6; V_RB0 = 7; V_RB1 = 8
V_ST = 9
V_RSTD = 13
V_MR = 17
V_LANE = 21; V_G4 = 22
V_B1P = 176
V_ONES = 24
V_B1 = 28
V_B1F = 32
V_CS = 40
V_T = 48
V_ACC = 64
V_F = 96
V_PK = 128
V_H = 144
NV = 176
S_WS = 4; S_W = 8; S_X = 12; S_B1 = 16; S_GW = 20
S_UK = 24; S_UV = 26
S_C = 28; S_N = 29; S_CB = 30; S_PF = 31; S_STR16 = 32; S_ST = 33; S_STP = 34; S_WV = 35; S_MB = 36
S_T0 = 37; S_T1 = 38; S_T2 = 39; S_SOFF = 40; S_SC = 41; S_C0 = 42; S_C1 = 43; S_END = 44; S_KIND = 45; S_B1O = 46
S_M = 48

def X(rt, s_): return a((rt * 16 + s_) * 4, 4)
def acc(ct, rt): return V_ACC + (ct * 4 + rt) * 4
def fr(slot): return V_F + 4 * slot
def mf(d, A_, B_, c): return "v_mfma_f32_16x16x32_bf16 %s, %s, %s, %s" % (d, A_, B_, c)

def tr_reads(grp, nxt):
    ct = grp >> 2; s0 = (grp & 3) * 4
    base = (V_RN0 if nxt else V_RC0) + ct
    o = []
    for k in range(4):
        slot = (grp & 1) * 4 + k
        for h in range(2):
            o.append("ds_read_b64_tr_b16 %s, %s offset:%d" % (v(fr(slot) + 2 * h, 2), v(base), (s0 + k) * 2048 + h * 256))
    return o

def group_mfmas(kind, grp):
    ct = grp >> 2; s0 = (grp & 3) * 4
    o = []
    for rt in range(4):
        for k in range(4):
            s_ = s0 + k
            W = v(fr((grp & 1) * 4 + k), 4); d = v(acc(ct, rt), 4)
            c = "0" if s_ == 0 else d
            o.append(mf(d, X(rt, s_), W, c) if kind == "V" else mf(d, W, X(rt, s_), c))
    if kind == "H":
        for k in range(4):
            s_ = s0 + k
            W = v(fr((grp & 1) * 4 + k), 4); d = v(V_CS + ct * 4, 4)
            o.append(mf(d, W, v(V_ONES, 4), "0" if s_ == 0 else d))
    return o

def cvt(dst, a0, a1): return "v_cvt_pk_bf16_f32 %s, %s, %s" % (v(dst), v(a0), v(a1))
def store(src, vo, off=0): return "buffer_store_dwordx4 %s, %s, %s, %s offen offset:%d" % (v(src, 4), v(vo), s(S_WS, 4), "%s", off)

def gelu_tile(ct, rt, dst):
    o = []
    A_ = acc(ct, rt); T = V_H + (rt & 1) * 8
    for r in range(4):
        o.append("v_fma_f32 %s, -%s, %s, %s" % (v(T + r), v(V_CS + ct * 4 + r), v(V_MR + rt), v((V_B1F if ct == 0 else V_B1P) + r)))
    for r in range(4):
        o.append("v_fma_f32 %s, %s, %s, %s" % (v(A_ + r), v(A_ + r), v(V_RSTD + rt), v(T + r)))
    for r in range(4): o.append("v_mul_f32 %s, %s, %s" % (v(T + r), v(A_ + r), v(A_ + r)))
    for r in range(4): o.append("v_fma_f32 %s, %s, %s, %s" % (v(T + r), v(T + r), s(S_C1), v(V_T + 15)))
    for r in range(4): o.append("v_mul_f32 %s, %s, %s" % (v(T + r), v(T + r), v(A_ + r)))
    for r in range(4): o.append("v_exp_f32 %s, %s" % (v(T + r), v(T + r)))
    for r in range(4): o.append("v_add_f32 %s, 1.0, %s" % (v(T + r), v(T + r)))
    for r in range(4): o.append("v_rcp_f32 %s, %s" % (v(T + r), v(T + r)))
    for r in range(4): o.append("v_mul_f32 %s, %s, %s" % (v(A_ + r), v(A_ + r), v(T + r)))
    o.append(cvt(dst, A_, A_ + 1)); o.append(cvt(dst + 1, A_ + 2, A_ + 3))
    return o

def partA(kind):
    o = []
    if kind in ("K", "Q"):
        for rt in range(4):
            A_ = acc(0, rt)
            if kind == "Q":
                for r in range(4): o.append("v_mul_f32 %s, %s, %s" % (v(A_ + r), s(S_SC), v(A_ + r)))
            o += [cvt(V_PK + 4 * rt, A_, A_ + 1), cvt(V_PK + 4 * rt + 1, A_ + 2, A_ + 3)]
    elif kind == "V":
        for b in range(2):
            d = V_PK + 4 * b
            o += [cvt(d, acc(0, 2 * b), acc(0, 2 * b) + 1), cvt(d + 1, acc(0, 2 * b) + 2, acc(0, 2 * b) + 3),
                  cvt(d + 2, acc(0, 2 * b + 1), acc(0, 2 * b + 1) + 1), cvt(d + 3, acc(0, 2 * b + 1) + 2, acc(0, 2 * b + 1) + 3)]
            o.append(store(d, V_ST + b, 0) % s(S_ST))
    else:
        for r in range(4): o.append("v_mov_b32 %s, %s" % (v(V_B1P + r), v(V_B1F + 4 + r)))
        for rt in range(4):
            o += gelu_tile(0, rt, V_PK + 4 * rt)
    return o

def partB(kind):
    o = []
    if kind in ("K", "Q"):
        for rt in range(4):
            A_ = acc(1, rt)
            if kind == "Q":
                for r in range(4): o.append("v_mul_f32 %s, %s, %s" % (v(A_ + r), s(S_SC), v(A_ + r)))
            o += [cvt(V_PK + 4 * rt + 2, A_, A_ + 1), cvt(V_PK + 4 * rt + 3, A_ + 2, A_ + 3)]
            o.append(store(V_PK + 4 * rt, V_ST + rt, 0) % s(S_STP))
    elif kind == "V":
        for b in range(2):
            d = V_PK + 8 + 4 * b
            o += [cvt(d, acc(1, 2 * b), acc(1, 2 * b) + 1), cvt(d + 1, acc(1, 2 * b) + 2, acc(1, 2 * b) + 3),
                  cvt(d + 2, acc(1, 2 * b + 1), acc(1, 2 * b + 1) + 1), cvt(d + 3, acc(1, 2 * b + 1) + 2, acc(1, 2 * b + 1) + 3)]
            o.append(store(d, V_ST + b, 1024) % s(S_STP))
    else:
        for rt in range(4):
            o += gelu_tile(1, rt, V_PK + 4 * rt + 2)
            o.append(store(V_PK + 4 * rt, V_ST + rt, 0) % s(S_STP))
    return o

def spread(gaps, items, g0, g1):
    n = g1 - g0
    for i, it in enumerate(items):
        gaps[g0 + (i * n) // max(len(items), 1)].append(it)

def dma_w():
    pre = ["s_add_u32 %s, %s, 3" % (s(S_T0), s(S_C)),
           "s_and_b32 %s, %s, 3" % (s(S_T0), s(S_T0)),
           "s_lshl_b32 %s, %s, 15" % (s(S_T0), s(S_T0)),
           "s_lshl_b32 %s, %s, 13" % (s(S_T1), s(S_WV)),
           "s_add_u32 %s, %s, %s" % (s(S_T0), s(S_T0), s(S_T1))]
    grp = []
    for i in range(8):
        g = []
        if i == 0: g.append("s_mov_b32 m0, %s" % s(S_T0))
        else:
            g.append("s_add_u32 m0, m0, 1024")
        if i > 0: g.append("s_add_u32 %s, %s, %s" % (s(S_SOFF), s(S_SOFF), s(S_STR16)))
        else: g.append("s_nop 0")
        g.append("buffer_load_dwordx4 %s, %s, %s offen lds" % (v(V_WOFF), s(S_W, 4), s(S_SOFF)))
        grp.append(g)
    return pre, grp

def pf_setup(kind):
    o = []
    if kind == "KV":
        o += ["s_cmp_lt_u32 %s, 128" % s(S_PF),
              "s_cselect_b32 %s, %s, %s" % (s(S_W), s(S_UK), s(S_UV)),
              "s_cselect_b32 %s, %s, %s" % (s(S_W + 1), s(S_UK + 1), s(S_UV + 1)),
              "s_and_b32 %s, %s, 127" % (s(S_SOFF), s(S_PF)),
              "s_lshl_b32 %s, %s, 6" % (s(S_SOFF), s(S_SOFF))]
    else:
        o += ["s_lshl_b32 %s, %s, 6" % (s(S_SOFF), s(S_PF))]
    o += ["s_lshl_b32 %s, %s, 3" % (s(S_T2), s(S_STR16)),
          "s_mul_i32 %s, %s, %s" % (s(S_T2), s(S_T2), s(S_WV)),
          "s_add_u32 %s, %s, %s" % (s(S_SOFF), s(S_SOFF), s(S_T2)),
          "s_add_u32 %s, %s, 1" % (s(S_PF), s(S_PF))]
    return o

def st_setup(kind):
    o = ["s_mov_b32 %s, %s" % (s(S_STP), s(S_ST))]
    if kind == "K":
        o += ["s_lshr_b32 %s, %s, 2" % (s(S_T0), s(S_CB)), "s_lshl_b32 %s, %s, 20" % (s(S_T0), s(S_T0)),
              "s_and_b32 %s, %s, 3" % (s(S_T1), s(S_CB)), "s_lshl_b32 %s, %s, 10" % (s(S_T1), s(S_T1))]
    elif kind == "V":
        o += ["s_lshr_b32 %s, %s, 2" % (s(S_T0), s(S_CB)), "s_and_b32 %s, %s, 31" % (s(S_T0), s(S_T0)), "s_lshl_b32 %s, %s, 20" % (s(S_T0), s(S_T0)),
              "s_and_b32 %s, %s, 3" % (s(S_T1), s(S_CB)), "s_lshl_b32 %s, %s, 11" % (s(S_T1), s(S_T1)), "s_add_u32 %s, %s, 8192" % (s(S_T1), s(S_T1))]
    elif kind == "Q":
        o += ["s_lshr_b32 %s, %s, 2" % (s(S_T0), s(S_CB)), "s_lshl_b32 %s, %s, 19" % (s(S_T0), s(S_T0)),
              "s_and_b32 %s, %s, 3" % (s(S_T1), s(S_CB)), "s_lshl_b32 %s, %s, 10" % (s(S_T1), s(S_T1))]
    else:
        o += ["s_mov_b32 %s, 0" % s(S_T0), "s_lshl_b32 %s, %s, 10" % (s(S_T1), s(S_CB))]
    o += ["s_add_u32 %s, %s, %s" % (s(S_T0), s(S_T0), s(S_T1)), "s_add_u32 %s, %s, %s" % (s(S_ST), s(S_T0), s(S_END + 3))]
    return o
S_WB = S_END + 3

def b1_loads():
    return ["s_add_u32 %s, %s, 1" % (s(S_B1O), s(S_CB)), "s_lshl_b32 %s, %s, 6" % (s(S_B1O), s(S_B1O)),
            "buffer_load_dwordx2 %s, %s, %s, %s offen" % (v(V_B1, 2), v(V_T + 14), s(S_B1, 4), s(S_B1O)),
            "buffer_load_dwordx2 %s, %s, %s, %s offen offset:32" % (v(V_B1 + 2, 2), v(V_T + 14), s(S_B1, 4), s(S_B1O))]

def place(gaps, cap, items, g0, g1, step=None):
    n = len(items)
    if n == 0: return
    g = g0
    for i, it in enumerate(items):
        lst = it if isinstance(it, list) else [it]
        want = g0 + (i * (g1 - g0)) // n
        g = max(g, want)
        while g < len(gaps) - 1 and cap[g] < min(len(lst), 2): g += 1
        gaps[g] += lst; cap[g] -= len(lst)

def body(kind, pfkind):
    o = ["s_waitcnt vmcnt(12)", "s_barrier"]
    pre, dg = dma_w()
    mf_all = []
    for grp in range(8): mf_all += group_mfmas(kind, grp)
    per = len(mf_all) // 8; n = len(mf_all)
    gaps = [[] for _ in range(n)]; cap = [2 if kind != "H" else 4] * n
    for grp in range(8):
        rds = tr_reads((grp + 1) % 8, grp == 7)
        for k, r_ in enumerate(rds):
            gaps[grp * per + k].append(r_); cap[grp * per + k] -= 1
    pB = partB(kind); pA = partA(kind)
    head = st_setup(kind)
    if kind == "H":
        unp = []
        for ct in range(2):
            for k in range(2):
                unp.append("v_lshlrev_b32 %s, 16, %s" % (v(V_B1F + ct * 4 + 2 * k), v(V_B1 + ct * 2 + k)))
                unp.append("v_and_b32 %s, 0xffff0000, %s" % (v(V_B1F + ct * 4 + 2 * k + 1), v(V_B1 + ct * 2 + k)))
        head = unp + b1_loads() + head
    head = head + pf_setup(pfkind) + pre
    hg = 0
    for x in head:
        while cap[hg] < 1 or (kind == "H" and len(gaps[hg]) >= 2): hg += 1
        gaps[hg].append(x); cap[hg] -= 1
    for i, g in enumerate(dg):
        gi = max(hg + 1, i * per + 9) if i > 0 else hg + 1
        if i > 0: gi = max(gi, lastg + 2)
        gaps[gi] += g[:2]; cap[gi] -= 2
        gaps[gi + 1] += g[2:]; cap[gi + 1] -= 1
        lastg = gi + 1
    first_b = 3 if kind != "H" else max(hg + 1, 6)
    place(gaps, cap, pB, first_b, 4 * per - 2)
    place(gaps, cap, pA, 4 * per + (3 if kind != "H" else 6), 8 * per - 8)
    adv = ["s_add_u32 %s, %s, 1" % (s(S_C), s(S_C)), "s_add_u32 %s, %s, 1" % (s(S_CB), s(S_CB)),
           "s_add_u32 %s, %s, 1" % (s(S_T0), s(S_C)), "s_and_b32 %s, %s, 3" % (s(S_T0), s(S_T0)), "s_lshl_b32 %s, %s, 15" % (s(S_T0), s(S_T0)),
           "v_mov_b32 %s, %s" % (v(V_RC0), v(V_RN0)), "v_mov_b32 %s, %s" % (v(V_RC1), v(V_RN1)),
           "v_add_u32 %s, %s, %s" % (v(V_RN0), s(S_T0), v(V_RB0)), "v_add_u32 %s, %s, %s" % (v(V_RN1), s(S_T0), v(V_RB1)),
           "s_cmp_lt_u32 %s, %s" % (s(S_CB), s(S_END))]
    ag = 7 * per + 8
    for x in adv:
        while cap[ag] < 1 and ag < n - 1: ag += 1
        gaps[ag].append(x); cap[ag] -= 1
    for grp in range(8):
        if OPT.get("gt"):
            o.append("s_memtime s[92:93]")
        o.append("s_waitcnt lgkmcnt(0)")
        if OPT.get("gt"):
            o.append("s_sub_u32 s93, s92, s94"); o.append("s_mov_b32 s94, s92")
            o.append("s_add_u32 s%d, s%d, s93" % (80 + grp, 80 + grp))
        for i in range(per):
            o.append(mf_all[grp * per + i]); o += gaps[grp * per + i]
    if OPT.get("nodma"): o = [x for x in o if not (x.startswith("buffer_load") and x.endswith("lds"))]
    if OPT.get("nostore"): o = [x for x in o if not x.startswith("buffer_store")]
    return o

def segment(A, L, kind, pfkind, tag):
    I = A.I
    I("s_cmp_ge_u32 %s, %s" % (s(S_CB), s(S_END))); I("s_cbranch_scc1 %s" % L(tag + "_skip"))
    I("s_mov_b32 %s, 0x10000000" % s(S_ST))
    A.L(L(tag + "_loop"))
    A.ext(body(kind, pfkind))
    I("s_cbranch_scc1 %s" % L(tag + "_loop"))
    I("s_mov_b32 %s, %s" % (s(S_STP), s(S_ST)))
    I("s_nop 7")
    A.ext(partB(kind))
    A.L(L(tag + "_skip"))

def gen_p1(name="p1_kernel", timing=False):
    A = Asm(); A.ext(kernel_header(name)); L = lambda x: name + "_" + x; I = A.I
    def stamp(k):
        if timing:
            I("s_memtime s[%d:%d]" % (80 + 2 * k, 81 + 2 * k)); I("s_waitcnt lgkmcnt(0)")
    I("s_cmp_ge_u32 s2, 256"); I("s_cbranch_scc1 %s" % L("end"))
    I("s_load_dwordx2 s[4:5], s[0:1], 112")
    I("s_load_dwordx4 s[56:59], s[0:1], 0")
    I("s_load_dwordx4 s[60:63], s[0:1], 16")
    I("s_load_dwordx2 s[26:27], s[0:1], 32")
    I("s_load_dwordx4 s[64:67], s[0:1], 56")
    I("s_load_dwordx2 s[20:21], s[0:1], 88")
    if timing:
        I("s_memtime s[70:71]"); I("s_memrealtime s[74:75]")
    I("v_lshrrev_b32 v48, 6, v0"); I("v_and_b32 v21, 63, v0"); I("v_lshrrev_b32 v22, 4, v21")
    I("v_readfirstlane_b32 %s, v48" % s(S_WV))
    I("v_lshlrev_b32 %s, 4, v21" % v(V_L16))
    I("s_lshr_b32 %s, s2, 5" % s(S_MB)); I("s_and_b32 s68, s2, 31")
    I("s_waitcnt lgkmcnt(0)")
    I("s_and_b32 s5, s5, 0xffff"); I("s_mov_b32 s6, 0x%x" % WS_BYTES); I("s_mov_b32 s7, 0x00020000")
    I("s_mov_b32 s24, s62"); I("s_and_b32 s25, s63, 0xffff"); I("s_and_b32 s27, s27, 0xffff")
    I("s_and_b32 s21, s21, 0xffff"); I("s_mov_b32 s22, 1024"); I("s_mov_b32 s23, 0x00020000")
    I("s_mov_b32 s16, s66"); I("s_and_b32 s17, s67, 0xffff"); I("s_mov_b32 s18, 2752"); I("s_mov_b32 s19, 0x00020000")
    I("s_mov_b32 s14, 0x200000"); I("s_mov_b32 s15, 0x00020000"); I("s_mov_b32 s11, 0x00020000")
    I("s_cmp_ge_u32 s2, 64"); I("s_cbranch_scc1 %s" % L("noflag"))
    I("s_cmp_lg_u32 %s, 0" % s(S_WV)); I("s_cbranch_scc1 %s" % L("noflag"))
    I("v_mov_b32 v50, 0"); I("v_mov_b32 v51, 0"); I("v_mov_b32 v52, 0"); I("v_mov_b32 v53, 0"); I("v_mov_b32 v54, 0")
    I("s_lshl_b32 s69, s2, 8"); I("s_add_u32 s69, s69, 0x%x" % FLAG_OFF)
    I("v_cmp_eq_u32 vcc, 0, v21"); I("s_and_saveexec_b64 s[72:73], vcc")
    I("buffer_store_dwordx4 v[50:53], v54, %s, s69 offen" % s(S_WS, 4))
    I("s_mov_b64 exec, s[72:73]")
    A.L(L("noflag"))
    I("s_cmp_lt_u32 s68, 18"); I("s_cbranch_scc1 %s" % L("role_kv"))
    I("s_cmp_lt_u32 s68, 27"); I("s_cbranch_scc1 %s" % L("role_q"))
    I("s_sub_u32 s68, s68, 27")
    I("s_mul_i32 %s, s68, 9" % s(S_CB)); I("s_sub_u32 s69, s68, 3"); I("s_max_i32 s69, s69, 0"); I("s_sub_u32 %s, %s, s69" % (s(S_CB), s(S_CB)))
    I("s_cmp_ge_u32 s68, 3"); I("s_cselect_b32 %s, 8, 9" % s(S_N))
    I("s_mov_b32 %s, 2" % s(S_KIND))
    I("s_mov_b32 s8, s64"); I("s_and_b32 s9, s65, 0xffff"); I("s_mov_b32 s10, %d" % (512 * 2752))
    I("s_mov_b32 %s, %d" % (s(S_STR16), 16 * 2752))
    I("s_mov_b32 s12, s56"); I("s_and_b32 s13, s57, 0xffff")
    I("s_branch %s" % L("role_j"))
    A.L(L("role_q"))
    I("s_sub_u32 s68, s68, 18")
    I("s_mul_i32 %s, s68, 14" % s(S_CB)); I("s_min_u32 s69, s68, 2"); I("s_add_u32 %s, %s, s69" % (s(S_CB), s(S_CB)))
    I("s_cmp_lt_u32 s68, 2"); I("s_cselect_b32 %s, 15, 14" % s(S_N))
    I("s_mov_b32 %s, 1" % s(S_KIND))
    I("s_mov_b32 s8, s60"); I("s_and_b32 s9, s61, 0xffff"); I("s_mov_b32 s10, 0x400000")
    I("s_mov_b32 %s, %d" % (s(S_STR16), 16 * 8192))
    I("s_mov_b32 s12, s56"); I("s_and_b32 s13, s57, 0xffff")
    I("s_branch %s" % L("role_j"))
    A.L(L("role_kv"))
    I("s_mul_i32 %s, s68, 14" % s(S_CB)); I("s_min_u32 s69, s68, 4"); I("s_add_u32 %s, %s, s69" % (s(S_CB), s(S_CB)))
    I("s_cmp_lt_u32 s68, 4"); I("s_cselect_b32 %s, 15, 14" % s(S_N))
    I("s_mov_b32 %s, 0" % s(S_KIND))
    I("s_mov_b32 s8, s24"); I("s_mov_b32 s9, s25"); I("s_mov_b32 s10, 0x400000")
    I("s_mov_b32 %s, %d" % (s(S_STR16), 16 * 8192))
    I("s_mov_b32 s12, s58"); I("s_and_b32 s13, s59, 0xffff")
    A.L(L("role_j"))
    I("s_lshr_b32 s69, %s, 4" % s(S_STR16))
    I("v_lshrrev_b32 v50, 2, v21"); I("v_mul_lo_u32 v50, v50, s69")
    if OPT.get("wswz"):
        I("v_lshrrev_b32 v51, 5, v21"); I("v_lshlrev_b32 v51, 1, v51"); I("v_and_b32 v52, 3, v21"); I("v_xor_b32 v51, v51, v52")
    else:
        I("v_and_b32 v51, 3, v21")
    I("v_lshlrev_b32 v51, 4, v51"); I("v_add_u32 %s, v50, v51" % v(V_WOFF))
    I("v_lshrrev_b32 v50, 4, v21"); I("v_and_b32 v51, 15, v21")
    I("v_lshlrev_b32 v52, 3, v50"); I("v_lshrrev_b32 v53, 2, v51"); I("v_add_u32 v52, v52, v53"); I("v_lshlrev_b32 v52, 6, v52")
    I("v_bfe_u32 v53, v51, 1, 1")
    if OPT.get("wswz"):
        I("v_and_b32 v54, 1, v50"); I("v_lshlrev_b32 v54, 1, v54"); I("v_xor_b32 v53, v53, v54")
    I("v_lshlrev_b32 v53, 4, v53")
    I("v_add_u32 v52, v52, v53"); I("v_and_b32 v53, 1, v51"); I("v_lshlrev_b32 v53, 3, v53"); I("v_add_u32 %s, v52, v53" % v(V_RB0))
    I("v_xor_b32 %s, 32, %s" % (v(V_RB1), v(V_RB0)))
    I("v_mov_b32 %s, %s" % (v(V_RC0), v(V_RB0))); I("v_mov_b32 %s, %s" % (v(V_RC1), v(V_RB1)))
    I("v_add_u32 %s, 0x8000, %s" % (v(V_RN0), v(V_RB0))); I("v_add_u32 %s, 0x8000, %s" % (v(V_RN1), v(V_RB1)))
    I("v_lshlrev_b32 %s, 3, v50" % v(V_T + 14))
    I("s_mov_b32 %s, %s" % (s(S_PF), s(S_CB)))
    def issue_w(cval, kindreg_dispatch=True):
        I("s_mov_b32 %s, %d" % (s(S_C), cval))
        I("s_cmp_eq_u32 %s, 0" % s(S_KIND)); I("s_cbranch_scc0 %s" % L("pf_o%d" % (cval + 3)))
        A.ext(pf_setup("KV")); I("s_branch %s" % L("pf_j%d" % (cval + 3)))
        A.L(L("pf_o%d" % (cval + 3))); A.ext(pf_setup("O")); A.L(L("pf_j%d" % (cval + 3)))
        pre, dg = dma_w(); A.ext(pre)
        for g in dg: A.ext(g)
    stamp(0)
    I("s_mov_b32 s98, 0"); I("s_mov_b32 s99, 0")
    issue_w(-3)
    stamp(1)
    I("v_lshrrev_b32 v50, 2, v21"); I("v_lshlrev_b32 v50, 10, v50"); I("v_and_b32 v51, 3, v21"); I("v_lshlrev_b32 v51, 4, v51"); I("v_add_u32 v56, v50, v51")
    I("s_lshl_b32 s68, %s, 8" % s(S_MB)); I("s_lshl_b32 s69, %s, 6" % s(S_WV)); I("s_add_u32 s68, s68, s69"); I("s_lshl_b32 s68, s68, 10")
    I("s_lshl_b32 s69, %s, 15" % s(S_WV)); I("s_add_u32 s69, s69, 0x8000")
    I("v_and_b32 v50, 15, v21"); I("v_lshlrev_b32 v51, 6, v50"); I("v_lshlrev_b32 v52, 4, v22"); I("v_add_u32 v58, v51, v52"); I("v_add_u32 v58, s69, v58")
    def xdma(p):
        for sl in range(2):
            for rt in range(4):
                I("s_add_u32 m0, s69, %d" % ((p % 4) * 8192 + sl * 4096 + rt * 1024))
                I("s_add_u32 %s, s68, %d" % (s(S_T0), rt * 16384 + (2 * p + sl) * 64))
                I("buffer_load_dwordx4 v56, %s, %s offen lds" % (s(S_X, 4), s(S_T0)))
    for p in range(4): xdma(p)
    stamp(2)
    for p in range(8):
        younger = min(3, 7 - p) * 8
        I("s_waitcnt vmcnt(%d)" % younger)
        for sl in range(2):
            for rt in range(4):
                I("ds_read_b128 %s, v58 offset:%d" % (X(rt, 2 * p + sl), (p % 4) * 8192 + sl * 4096 + rt * 1024))
        if p + 4 < 8:
            I("s_waitcnt lgkmcnt(0)")
            xdma(p + 4)
    I("s_waitcnt lgkmcnt(0)")
    stamp(3)
    I("s_barrier")
    issue_w(-2); issue_w(-1)
    stamp(4)
    I("s_mov_b32 %s, 0" % s(S_C))
    I("s_add_u32 %s, %s, %s" % (s(S_END), s(S_CB), s(S_N)))
    I("s_lshl_b32 s68, %s, 4" % s(S_MB)); I("s_lshl_b32 s69, %s, 2" % s(S_WV)); I("s_add_u32 s68, s68, s69")
    I("s_cmp_eq_u32 %s, 1" % s(S_KIND)); I("s_cbranch_scc1 %s" % L("run_q"))
    I("s_cmp_eq_u32 %s, 2" % s(S_KIND)); I("s_cbranch_scc1 %s" % L("run_h"))
    I("s_lshl_b32 %s, s68, 13" % s(S_WB)); I("s_add_u32 %s, %s, 0x%x" % (s(S_WB), s(S_WB), KV_OFF))
    def first_reads():
        I("s_waitcnt vmcnt(8)")
        I("s_barrier")
        A.ext(tr_reads(0, False))
    first_reads()
    stamp(5)
    if OPT.get("gt"):
        for k in range(8): I("s_mov_b32 s%d, 0" % (80 + k))
        I("s_memtime s[94:95]"); I("s_waitcnt lgkmcnt(0)")
    I("s_mov_b32 s69, %s" % s(S_END)); I("s_min_u32 %s, %s, 128" % (s(S_END), s(S_END)))
    for rt in range(4): I("v_add_u32 %s, %d, %s" % (v(V_ST + rt), (rt >> 1) * 16384 + (rt & 1) * 4096, v(V_L16)))
    segment(A, L, "K", "KV", "segk")
    I("s_mov_b32 %s, s69" % s(S_END))
    for b in range(2): I("v_add_u32 %s, %d, %s" % (v(V_ST + b), b * 16384, v(V_L16)))
    segment(A, L, "V", "KV", "segv")
    I("s_branch %s" % L("done"))
    A.L(L("run_q"))
    I("s_lshl_b32 %s, s68, 12" % s(S_WB))
    if QF_OFF: I("s_add_u32 %s, %s, 0x%x" % (s(S_WB), s(S_WB), QF_OFF))
    I("s_mov_b32 %s, 0x%x" % (s(S_SC), fbits(QSCALE)))
    for rt in range(4): I("v_add_u32 %s, %d, %s" % (v(V_ST + rt), rt * 4096, v(V_L16)))
    first_reads()
    segment(A, L, "Q", "O", "segq")
    I("s_branch %s" % L("done"))
    A.L(L("run_h"))
    I("s_mul_i32 %s, s68, %d" % (s(S_WB), NSLAB * 1024)); I("s_add_u32 %s, %s, 0x%x" % (s(S_WB), s(S_WB), AM_OFF + 128 * 1024))
    for rt in range(4): I("v_add_u32 %s, %d, %s" % (v(V_ST + rt), rt * NSLAB * 1024, v(V_L16)))
    I("s_mov_b32 %s, 0x%x" % (s(S_C1), fbits(GC1))); I("v_mov_b32 %s, 0x%x" % (v(V_T + 15), fbits(GC0)))
    for r in range(4): I("v_mov_b32 %s, 0x3f803f80" % v(V_ONES + r))
    I("v_lshlrev_b32 v51, 4, v22")
    I("v_and_b32 v52, 8, v21"); I("v_cmp_eq_u32 %s, 0, v52" % s(S_M, 2))
    G = V_H
    for s_ in range(16):
        I("buffer_load_dwordx4 %s, v51, %s, 0 offen offset:%d" % (v(G + 4 * s_, 4), s(S_GW, 4), s_ * 64))
    I("s_waitcnt vmcnt(0)")
    for s_ in range(16):
        for r in range(4):
            I("v_cndmask_b32 %s, %s, %s, %s" % (v(G + 4 * s_ + r), v(G + 4 * s_ + r), v(V_ONES), s(S_M, 2)))
    I("s_nop 1")
    for rt in range(4):
        for s_ in range(16):
            d = v(V_ACC + 4 * rt, 4); I(mf(d, v(G + 4 * s_, 4), X(rt, s_), "0" if s_ == 0 else d))
        for s_ in range(16):
            d = v(V_ACC + 16 + 4 * rt, 4); I(mf(d, X(rt, s_), X(rt, s_), "0" if s_ == 0 else d))
    I("s_nop 7")
    I("v_and_b32 v52, 3, v21")
    for r in range(1, 4): I("v_cmp_eq_u32 %s, %d, v52" % (s(S_M + 2 * r, 2), r))
    I("v_bfe_u32 v53, v21, 2, 2"); I("v_cmp_eq_u32 vcc, v53, v22")
    import gen_p2
    for rt in range(4):
        sq = V_ACC + 16 + 4 * rt; st = V_ACC + 4 * rt
        t0, t1, t2 = v(V_T), v(V_T + 1), v(V_T + 2)
        I("v_mov_b32 %s, %s" % (t0, v(sq)))
        for r in range(1, 4): I("v_cndmask_b32 %s, %s, %s, %s" % (t0, t0, v(sq + r), s(S_M + 2 * r, 2)))
        I("v_cndmask_b32 %s, 0, %s, vcc" % (t0, t0))
        A.ext(gen_p2.xreduce("v_add_f32", t0, t1))
        I("v_mov_b32 %s, %s" % (t1, v(st))); I("v_mov_b32 %s, %s" % (t2, v(st))); I("s_nop 1")
        I("v_permlane32_swap_b32 %s, %s" % (t1, t2))
        I("s_nop 1")
        I("v_mul_f32 %s, 0x%x, %s" % (t1, fbits(1.0 / 512), t1))
        I("v_mul_f32 %s, 0x%x, %s" % (t0, fbits(1.0 / 512), t0))
        I("v_fma_f32 %s, -%s, %s, %s" % (t0, t1, t1, t0))
        I("v_max_f32 %s, 0, %s" % (t0, t0))
        I("v_add_f32 %s, 0x%x, %s" % (t0, fbits(1e-5), t0))
        I("v_rsq_f32 %s, %s" % (v(V_RSTD + rt), t0)); I("s_nop 1")
        I("v_mul_f32 %s, %s, %s" % (v(V_MR + rt), t1, v(V_RSTD + rt)))
        I("v_mul_f32 %s, 0x%x, %s" % (t2, fbits(-math.log2(math.e)), t2))
        I("v_exp_f32 %s, %s" % (t2, t2)); I("s_nop 1"); I("v_add_f32 %s, 1.0, %s" % (t2, t2)); I("v_rcp_f32 %s, %s" % (v(V_T + 4 + rt), t2))
    I("s_cmp_lg_u32 %s, 0" % s(S_CB)); I("s_cbranch_scc1 %s" % L("h_nog"))
    I("v_and_b32 v56, 15, v21"); I("v_lshlrev_b32 v56, 2, v56")
    I("s_lshl_b32 s69, s68, 6"); I("s_add_u32 s69, s69, 0x%x" % G_OFF)
    I("v_cmp_gt_u32 vcc, 16, v21"); I("s_and_saveexec_b64 s[72:73], vcc")
    for rt in range(4): I("buffer_store_dword %s, v56, %s, s69 offen offset:%d" % (v(V_T + 4 + rt), s(S_WS, 4), rt * 64))
    I("s_mov_b64 exec, s[72:73]")
    A.L(L("h_nog"))
    I("s_sub_u32 %s, %s, 1" % (s(S_CB), s(S_CB))); A.ext(b1_loads()); I("s_add_u32 %s, %s, 1" % (s(S_CB), s(S_CB)))
    I("s_waitcnt vmcnt(0)")
    I("s_barrier")
    A.ext(tr_reads(0, False))
    segment(A, L, "H", "O", "segh")
    A.L(L("done"))
    if timing:
        I("s_waitcnt vmcnt(0)")
        I("s_memtime s[72:73]"); I("s_memrealtime s[76:77]"); I("s_waitcnt lgkmcnt(0)")
        I("s_sub_u32 s76, s76, s74"); I("s_sub_u32 s72, s72, s70")
        I("s_lshl_b32 s68, s2, 3"); I("s_add_u32 s68, s68, %s" % s(S_WV)); I("s_lshl_b32 s68, s68, 2"); I("s_add_u32 s68, s68, 0x%x" % (96 << 20))
        I("v_mov_b32 v50, s72"); I("v_mov_b32 v51, 0"); I("buffer_store_dword v50, v51, %s, s68 offen" % s(S_WS, 4))
        I("v_mov_b32 v52, s76"); I("s_add_u32 s68, s68, 0x10000"); I("buffer_store_dword v52, v51, %s, s68 offen" % s(S_WS, 4))
        I("v_mov_b32 v52, s74"); I("s_add_u32 s68, s68, 0x10000"); I("buffer_store_dword v52, v51, %s, s68 offen" % s(S_WS, 4))
        if OPT.get("wt"):
            I("s_add_u32 s88, s98, s70"); I("s_add_u32 s86, s99, s70")
        for k in range(8 if OPT.get("gt") else 0):
            I("v_mov_b32 v52, s%d" % (80 + k)); I("s_add_u32 s68, s68, 0x10000"); I("buffer_store_dword v52, v51, %s, s68 offen" % s(S_WS, 4)); I("s_nop 1")
        for k in range(6 if not OPT.get("gt") else 0):
            I("s_sub_u32 s69, s%d, s70" % (80 + 2 * k)); I("v_mov_b32 v52, s69"); I("s_add_u32 s68, s68, 0x10000"); I("buffer_store_dword v52, v51, %s, s68 offen" % s(S_WS, 4)); I("s_nop 1")
    I("s_waitcnt vmcnt(0)")
    A.L(L("end")); I("s_endpgm")
    return A, kernel_desc(name, 256 + 256, 100, 256)

if __name__ == "__main__":
    import sys
    for a_ in sys.argv[1:]: OPT[a_] = True
    A, desc = gen_p1(timing=True)
    p = Prog(A.lines)
    for e in p.check_hazards(): print(e)
    hdr = "; @launch kernel=p1_kernel grid=(256,1,1) block=(256,1,1) lds=163840\n.amdgcn_target \"amdgcn-amd-amdhsa--gfx950\"\n.text\n"
    open("p1.s", "w").write(hdr + A.text() + ".section .rodata,\"a\"\n.p2align 6\n" + desc + "\n")
    print("instrs:", len(p.ins))
```

```python
from asmlib import *
from layout import *
OPT = {}
TOFF = 96 << 20
XCH_OFF = 84 << 20
V_L16 = 1; V_WO0 = 2; V_WO1 = 3
V_RA = 4
V_RW0 = 5; V_RW1 = 6
V_CA = 7; V_CW0 = 8; V_CW1 = 9
V_NA = 10; V_NW0 = 11; V_NW1 = 12
V_LANE = 13; V_G4 = 14; V_T = 15
V_ACC = 32
V_F = 64
V_R = 112
NV = 160
S_WS = 4; S_W = 8; S_OUT = 12; S_B2 = 16; S_DBG = 20
S_WV = 24; S_KQ = 25; S_TM = 26; S_TN = 27; S_C = 28; S_NST = 29; S_AO = 30; S_WO = 31; S_T0 = 32; S_T1 = 33; S_ODD = 34; S_TILE = 35; S_WR = 36; S_WC = 37
def acc(tt, ct): return V_ACC + (tt * 2 + ct) * 4
def fa(buf, tt): return V_F + buf * 24 + tt * 4
def fw(buf, ct): return V_F + buf * 24 + 16 + ct * 4
def reads(buf, j, nxt):
    ra, r0, r1 = (V_NA, V_NW0, V_NW1) if nxt else (V_CA, V_CW0, V_CW1)
    o = []
    for tt in range(4):
        o.append("ds_read_b128 %s, %s offset:%d" % (v(fa(buf, tt), 4), v(ra), j * 16384 + tt * 1024))
    for ct, rr in ((0, r0), (1, r1)):
        for h in range(2):
            o.append("ds_read_b64_tr_b16 %s, %s offset:%d" % (v(fw(buf, ct) + 2 * h, 2), v(rr), j * 16384 + 8192 + h * 4096))
    return o
def mfmas(buf):
    o = []
    for tt in range(4):
        for ct in range(2):
            d = v(acc(tt, ct), 4)
            o.append("v_mfma_f32_16x16x32_bf16 %s, %s, %s, %s" % (d, v(fw(buf, ct), 4), v(fa(buf, tt), 4), d))
    return o
def dma():
    o = ["s_add_u32 %s, %s, 3" % (s(S_T0), s(S_C)), "s_and_b32 %s, %s, 3" % (s(S_T0), s(S_T0)), "s_lshl_b32 %s, %s, 15" % (s(S_T0), s(S_T0)),
         "s_lshl_b32 %s, %s, 10" % (s(S_T1), s(S_WV)), "s_add_u32 %s, %s, %s" % (s(S_T0), s(S_T0), s(S_T1))]
    g = [["s_mov_b32 m0, %s" % s(S_T0), "s_nop 0", "buffer_load_dwordx4 %s, %s, %s offen lds" % (v(V_L16), s(S_WS, 4), s(S_AO))],
         ["s_add_u32 m0, m0, 8192", "s_add_u32 %s, %s, 1024" % (s(S_AO), s(S_AO)), "buffer_load_dwordx4 %s, %s, %s offen lds" % (v(V_WO0), s(S_W, 4), s(S_WO))],
         ["s_add_u32 m0, m0, 8192", "s_add_u32 %s, %s, 32768" % (s(S_WO), s(S_WO)), "buffer_load_dwordx4 %s, %s, %s offen lds" % (v(V_L16), s(S_WS, 4), s(S_AO))],
         ["s_add_u32 m0, m0, 8192", "s_add_u32 %s, %s, 1024" % (s(S_AO), s(S_AO)), "buffer_load_dwordx4 %s, %s, %s offen lds" % (v(V_WO0), s(S_W, 4), s(S_WO))],
         ["s_add_u32 %s, %s, 32768" % (s(S_WO), s(S_WO))]]
    return o, g

def gen_p3(name="p3_kernel", timing=False):
    A = Asm(); A.ext(kernel_header(name)); L = lambda x: name + "_" + x; I = A.I
    I("s_cmp_ge_u32 s2, 256"); I("s_cbranch_scc1 %s" % L("end"))
    I("s_load_dwordx2 s[4:5], s[0:1], 112")
    I("s_load_dwordx2 s[40:41], s[0:1], 40")
    I("s_load_dwordx4 s[44:47], s[0:1], 72")
    I("s_load_dwordx4 s[48:51], s[0:1], 96")
    if timing:
        I("s_memtime s[60:61]"); I("s_memrealtime s[64:65]")
    I("v_lshrrev_b32 v15, 6, v0"); I("v_and_b32 %s, 63, v0" % v(V_LANE))
    I("v_readfirstlane_b32 %s, v15" % s(S_WV))
    I("v_lshlrev_b32 %s, 4, %s" % (v(V_L16), v(V_LANE))); I("v_lshrrev_b32 %s, 4, %s" % (v(V_G4), v(V_LANE)))
    I("s_and_b32 s52, s2, 7"); I("s_lshr_b32 s53, s2, 3")
    I("s_lshr_b32 %s, s52, 1" % s(S_KQ))
    I("s_and_b32 %s, s52, 1" % s(S_TM)); I("s_lshl_b32 %s, %s, 3" % (s(S_TM), s(S_TM))); I("s_and_b32 s54, s53, 7"); I("s_add_u32 %s, %s, s54" % (s(S_TM), s(S_TM)))
    I("s_lshr_b32 %s, s53, 3" % s(S_TN))
    I("s_lshl_b32 %s, %s, 2" % (s(S_TILE), s(S_TM))); I("s_add_u32 %s, %s, %s" % (s(S_TILE), s(S_TILE), s(S_TN)))
    I("s_lshr_b32 %s, %s, 2" % (s(S_WR), s(S_WV))); I("s_and_b32 %s, %s, 3" % (s(S_WC), s(S_WV)))
    I("s_waitcnt lgkmcnt(0)")
    I("s_and_b32 s5, s5, 0xffff"); I("s_mov_b32 s6, 0x%x" % WS_BYTES); I("s_mov_b32 s7, 0x00020000")
    I("s_mov_b32 s12, s48"); I("s_and_b32 s13, s49, 0xffff"); I("s_mov_b32 s14, 0x200000"); I("s_mov_b32 s15, 0x00020000")
    I("s_mov_b32 s16, s46"); I("s_and_b32 s17, s47, 0xffff"); I("s_mov_b32 s18, 1024"); I("s_mov_b32 s19, 0x00020000")
    I("s_mov_b32 s20, s50"); I("s_and_b32 s21, s51, 0xffff"); I("s_mov_b32 s22, 256"); I("s_mov_b32 s23, 0x00020000")
    I("s_mov_b32 s11, 0x00020000")
    I("s_cmp_eq_u32 %s, 3" % s(S_KQ)); I("s_cbranch_scc1 %s" % L("kq3"))
    I("s_mul_i32 s54, %s, 42" % s(S_KQ)); I("s_min_u32 s55, %s, 1" % s(S_KQ)); I("s_lshl_b32 s55, s55, 1"); I("s_add_u32 s54, s54, s55")
    I("s_cmp_eq_u32 %s, 0" % s(S_KQ)); I("s_cselect_b32 %s, 22, 21" % s(S_NST)); I("s_mov_b32 %s, 0" % s(S_ODD))
    I("s_mov_b32 s8, s40"); I("s_and_b32 s9, s41, 0xffff"); I("s_mov_b32 s10, 0x400000")
    I("s_lshl_b32 %s, s54, 15" % s(S_WO))
    I("s_branch %s" % L("kqj"))
    A.L(L("kq3"))
    I("s_mov_b32 s54, 128"); I("s_mov_b32 %s, 21" % s(S_NST)); I("s_mov_b32 %s, 1" % s(S_ODD))
    I("s_mov_b32 s8, s44"); I("s_and_b32 s9, s45, 0xffff"); I("s_mov_b32 s10, %d" % (1376 * 1024))
    I("s_mov_b32 %s, 0" % s(S_WO))
    A.L(L("kqj"))
    I("s_lshl_b32 s55, %s, 12" % s(S_WV)); I("s_add_u32 %s, %s, s55" % (s(S_WO), s(S_WO)))
    I("s_lshl_b32 s55, %s, 8" % s(S_TN)); I("s_add_u32 %s, %s, s55" % (s(S_WO), s(S_WO)))
    I("s_lshl_b32 s55, %s, 3" % s(S_TM)); I("s_add_u32 s55, s55, %s" % s(S_WV)); I("s_mul_i32 s55, s55, %d" % NSLAB); I("s_add_u32 s55, s55, s54")
    I("s_lshl_b32 %s, s55, 10" % s(S_AO)); I("s_add_u32 %s, %s, 0x%x" % (s(S_AO), s(S_AO), AM_OFF))
    I("v_and_b32 v16, 15, %s" % v(V_LANE)); I("s_and_b32 s55, %s, 1" % s(S_WV)); I("s_lshl_b32 s55, s55, 2")
    I("v_add_u32 v17, s55, %s" % v(V_G4)); I("v_lshlrev_b32 v17, 1, v17"); I("v_xor_b32 v17, v17, v16"); I("v_lshlrev_b32 v17, 4, v17")
    I("v_lshlrev_b32 v18, 10, %s" % v(V_G4)); I("v_add_u32 %s, v17, v18" % v(V_WO0))
    I("s_lshl_b32 s55, %s, 12" % s(S_WR)); I("v_add_u32 %s, s55, %s" % (v(V_RA), v(V_L16)))
    I("v_lshrrev_b32 v17, 2, v16"); I("v_lshlrev_b32 v18, 2, %s" % v(V_G4)); I("v_add_u32 v17, v17, v18")
    I("v_and_b32 v18, 7, v17"); I("s_lshl_b32 s55, %s, 1" % s(S_WC)); I("v_xor_b32 v18, s55, v18"); I("v_lshlrev_b32 v18, 5, v18")
    I("v_lshlrev_b32 v17, 8, v17"); I("v_add_u32 v17, v17, v18"); I("v_and_b32 v18, 3, v16"); I("v_lshlrev_b32 v18, 3, v18")
    I("v_add_u32 %s, v17, v18" % v(V_RW0)); I("v_xor_b32 %s, 32, %s" % (v(V_RW1), v(V_RW0)))
    for x_, y_ in ((V_CA, V_RA), (V_CW0, V_RW0), (V_CW1, V_RW1)): I("v_mov_b32 %s, %s" % (v(x_), v(y_)))
    for x_, y_ in ((V_NA, V_RA), (V_NW0, V_RW0), (V_NW1, V_RW1)): I("v_add_u32 %s, 0x8000, %s" % (v(x_), v(y_)))
    for r in range(32): I("v_mov_b32 %s, 0" % v(V_ACC + r))
    for c in (-3, -2, -1):
        I("s_mov_b32 %s, %d" % (s(S_C), c))
        pre, g = dma(); A.ext(pre)
        for x in g: A.ext(x)
    I("s_mov_b32 %s, 0" % s(S_C))
    I("s_waitcnt vmcnt(8)"); I("s_barrier")
    A.ext(reads(0, 0, False))
    if timing: I("s_memtime s[68:69]")
    A.L(L("loop"))
    I("s_waitcnt vmcnt(4)"); I("s_barrier")
    pre, g = dma()
    m0 = mfmas(0); m1 = mfmas(1)
    rB = reads(1, 1, False); rN = reads(0, 0, True)
    o = ["s_waitcnt lgkmcnt(0)"]
    fill = [[x] for x in rB]
    for i in range(8): fill[i] += ([pre[i]] if i < len(pre) else [])
    fill[5] += g[0]; fill[6] += g[1]; fill[7] += g[2]
    for i in range(8): o.append(m0[i]); o += fill[i]
    o.append("s_waitcnt lgkmcnt(0)")
    adv = ["s_add_u32 %s, %s, 1" % (s(S_C), s(S_C)), "s_add_u32 %s, %s, 1" % (s(S_T0), s(S_C)), "s_and_b32 %s, %s, 3" % (s(S_T0), s(S_T0)), "s_lshl_b32 %s, %s, 15" % (s(S_T0), s(S_T0))]
    fill = [[x] for x in rN]
    fill[0] += g[3]; fill[1] += g[4]
    for i, x in enumerate(adv): fill[2 + i].append(x)
    for i in range(8): o.append(m1[i]); o += fill[i]
    for x_, y_, z_ in ((V_CA, V_NA, V_RA), (V_CW0, V_NW0, V_RW0), (V_CW1, V_NW1, V_RW1)):
        o.append("v_mov_b32 %s, %s" % (v(x_), v(y_))); o.append("v_add_u32 %s, %s, %s" % (v(y_), s(S_T0), v(z_)))
    o += ["s_cmp_lt_u32 %s, %s" % (s(S_C), s(S_NST)), "s_cbranch_scc1 %s" % L("loop")]
    A.ext(o)
    I("s_cmp_eq_u32 %s, 0" % s(S_ODD)); I("s_cbranch_scc1 %s" % L("notail"))
    I("s_waitcnt lgkmcnt(0)")
    A.ext(mfmas(0))
    A.L(L("notail"))
    if timing: I("s_memtime s[70:71]")
    I("s_waitcnt vmcnt(0) lgkmcnt(0)")
    I("s_nop 7")
    I("s_lshl_b32 s52, %s, 2" % s(S_TILE)); I("s_add_u32 s52, s52, %s" % s(S_KQ)); I("s_lshl_b32 s52, s52, 16"); I("s_add_u32 s52, s52, 0x%x" % XCH_OFF)
    I("s_lshl_b32 s53, %s, 15" % s(S_WR)); I("s_lshl_b32 s54, %s, 11" % s(S_WC)); I("s_add_u32 s53, s53, s54")
    I("s_add_u32 s52, s52, s53")
    for half in range(2):
        I("s_lshl_b32 s54, %s, 1" % s(S_WR)); I("s_add_u32 s54, s54, %d" % half)
        I("s_cmp_eq_u32 s54, %s" % s(S_KQ)); I("s_cbranch_scc1 %s" % L("skipst%d" % half))
        for t2 in range(2):
            tt = 2 * half + t2
            I("s_add_u32 s55, s52, %d" % (tt * 8192))
            for ct in range(2):
                I("buffer_store_dwordx4 %s, %s, %s, s55 offen offset:%d %s" % (v(acc(tt, ct), 4), v(V_L16), s(S_WS, 4), ct * 1024, OPT.get("stmod", "sc1")))
        A.L(L("skipst%d" % half))
    I("s_waitcnt vmcnt(0)")
    if timing: I("s_memtime s[74:75]")
    I("s_barrier")
    I("s_cmp_lg_u32 %s, 0" % s(S_WV)); I("s_cbranch_scc1 %s" % L("nosig"))
    I("v_mov_b32 v16, 0"); I("v_mov_b32 v17, 1"); I("s_lshl_b32 s52, %s, 8" % s(S_TILE)); I("s_add_u32 s52, s52, 0x%x" % FLAG_OFF)
    I("s_lshl_b32 s53, %s, 2" % s(S_KQ)); I("s_add_u32 s53, s53, s52")
    I("v_cmp_eq_u32 vcc, 0, %s" % v(V_LANE)); I("s_and_saveexec_b64 s[56:57], vcc")
    I("buffer_store_dword v17, v16, %s, s53 offen sc1" % s(S_WS, 4))
    I("s_mov_b64 exec, s[56:57]")
    I("s_mov_b32 s53, 0")
    A.L(L("poll"))
    I("buffer_load_dwordx4 v[20:23], v16, %s, s52 offen sc1" % s(S_WS, 4))
    I("s_waitcnt vmcnt(0)")
    I("v_add_u32 v18, v20, v21"); I("v_add_u32 v19, v22, v23"); I("v_add_u32 v18, v18, v19"); I("s_nop 0")
    I("v_readfirstlane_b32 s54, v18")
    I("s_add_u32 s53, s53, 1")
    I("s_cmp_eq_u32 s54, 4"); I("s_cbranch_scc1 %s" % L("nosig"))
    I("s_cmp_lt_u32 s53, 0x400000"); I("s_cbranch_scc0 %s" % L("nosig"))
    I("s_branch %s" % L("poll"))
    A.L(L("nosig"))
    I("s_barrier")
    if timing: I("s_memtime s[72:73]")
    I("s_lshr_b32 s52, %s, 1" % s(S_KQ)); I("s_cmp_lg_u32 s52, %s" % s(S_WR)); I("s_cbranch_scc1 %s" % L("fin"))
    for j in range(1, 4):
        I("s_add_u32 s52, %s, %d" % (s(S_KQ), j)); I("s_and_b32 s52, s52, 3")
        I("s_lshl_b32 s53, %s, 2" % s(S_TILE)); I("s_add_u32 s53, s53, s52"); I("s_lshl_b32 s53, s53, 16"); I("s_add_u32 s53, s53, 0x%x" % XCH_OFF)
        I("s_lshl_b32 s54, %s, 14" % s(S_KQ)); I("s_add_u32 s53, s53, s54")
        I("s_lshl_b32 s54, %s, 11" % s(S_WC)); I("s_add_u32 s53, s53, s54")
        for t2 in range(2):
            if t2: I("s_add_u32 s53, s53, 8192")
            for ct in range(2):
                I("buffer_load_dwordx4 %s, %s, %s, s53 offen offset:%d sc1" % (v(V_R + (j - 1) * 16 + (t2 * 2 + ct) * 4, 4), v(V_L16), s(S_WS, 4), ct * 1024))
    I("v_and_b32 v16, 15, %s" % v(V_LANE)); I("v_lshlrev_b32 v17, 2, v16")
    I("s_lshl_b32 s52, %s, 3" % s(S_TM)); I("s_lshl_b32 s53, %s, 1" % s(S_KQ)); I("s_add_u32 s52, s52, s53")
    I("s_lshl_b32 s53, s52, 6"); I("s_add_u32 s53, s53, 0x%x" % G_OFF)
    I("buffer_load_dword v20, v17, %s, s53 offen" % s(S_WS, 4)); I("buffer_load_dword v21, v17, %s, s53 offen offset:64" % s(S_WS, 4))
    I("v_lshlrev_b32 v19, 3, %s" % v(V_G4))
    I("s_lshl_b32 s54, %s, 8" % s(S_TN)); I("s_lshl_b32 s55, %s, 6" % s(S_WC)); I("s_add_u32 s54, s54, s55")
    I("buffer_load_dwordx2 v[22:23], v19, %s, s54 offen" % s(S_B2, 4)); I("buffer_load_dwordx2 v[24:25], v19, %s, s54 offen offset:32" % s(S_B2, 4))
    OWN = V_F
    I("s_and_b32 s55, %s, 1" % s(S_KQ)); I("s_cmp_eq_u32 s55, 0"); I("s_cbranch_scc1 %s" % L("own0"))
    for r in range(16): I("v_mov_b32 %s, %s" % (v(OWN + r), v(V_ACC + 16 + r)))
    I("s_branch %s" % L("ownj"))
    A.L(L("own0"))
    for r in range(16): I("v_mov_b32 %s, %s" % (v(OWN + r), v(V_ACC + r)))
    A.L(L("ownj"))
    I("s_waitcnt vmcnt(0)")
    I("v_sub_f32 v26, 1.0, v20"); I("v_sub_f32 v27, 1.0, v21")
    I("v_lshlrev_b32 v28, 10, v16"); I("v_add_u32 v28, v28, v19")
    I("s_lshl_b32 s52, s52, 14"); I("s_add_u32 s52, s52, s54")
    CO = V_F + 16
    for j in range(4):
        I("s_add_u32 s53, %s, %d" % (s(S_KQ), j)); I("s_and_b32 s53, s53, 3"); I("s_cmp_eq_u32 s53, 3"); I("s_cselect_b64 s[56:57], -1, 0")
        for t2 in range(2):
            I("v_cndmask_b32 %s, v%d, v%d, s[56:57]" % (v(CO + j * 2 + t2), 20 + t2, 26 + t2))
    for ct in range(2):
        B = V_F + 24 + ct * 4
        I("v_lshlrev_b32 %s, 16, v%d" % (v(B), 22 + 2 * ct)); I("v_and_b32 %s, 0xffff0000, v%d" % (v(B + 1), 22 + 2 * ct))
        I("v_lshlrev_b32 %s, 16, v%d" % (v(B + 2), 23 + 2 * ct)); I("v_and_b32 %s, 0xffff0000, v%d" % (v(B + 3), 23 + 2 * ct))
    for t2 in range(2):
        for ct in range(2):
            o_ = OWN + (t2 * 2 + ct) * 4; B = V_F + 24 + ct * 4
            for r in range(4):
                I("v_mul_f32 %s, %s, %s" % (v(o_ + r), v(o_ + r), v(CO + t2)))
                for j in range(1, 4):
                    I("v_fma_f32 %s, %s, %s, %s" % (v(o_ + r), v(V_R + (j - 1) * 16 + (t2 * 2 + ct) * 4 + r), v(CO + j * 2 + t2), v(o_ + r)))
                I("v_fma_f32 %s, %s, v%d, %s" % (v(o_ + r), v(B + r), 26 + t2, v(o_ + r)))
            I("v_cvt_pk_bf16_f32 %s, %s, %s" % (v(o_), v(o_), v(o_ + 1))); I("v_cvt_pk_bf16_f32 %s, %s, %s" % (v(o_ + 1), v(o_ + 2), v(o_ + 3)))
        if t2: I("s_add_u32 s52, s52, 16384")
        for ct in range(2):
            I("buffer_store_dwordx2 %s, v28, %s, s52 offen offset:%d" % (v(OWN + (t2 * 2 + ct) * 4, 2), s(S_OUT, 4), ct * 32))
    A.L(L("fin"))
    if timing:
        I("s_waitcnt vmcnt(0)")
        I("s_memtime s[62:63]"); I("s_memrealtime s[66:67]"); I("s_waitcnt lgkmcnt(0)")
        I("s_sub_u32 s66, s66, s64"); I("s_sub_u32 s62, s62, s60")
        I("s_lshl_b32 s52, s2, 3"); I("s_add_u32 s52, s52, %s" % s(S_WV)); I("s_lshl_b32 s52, s52, 2"); I("s_add_u32 s52, s52, 0x%x" % TOFF)
        I("v_mov_b32 v16, s62"); I("v_mov_b32 v17, 0"); I("buffer_store_dword v16, v17, %s, s52 offen" % s(S_WS, 4))
        I("v_mov_b32 v18, s66"); I("s_add_u32 s52, s52, 0x10000"); I("buffer_store_dword v18, v17, %s, s52 offen" % s(S_WS, 4))
        I("v_mov_b32 v18, s64"); I("s_add_u32 s52, s52, 0x10000"); I("buffer_store_dword v18, v17, %s, s52 offen" % s(S_WS, 4))
        for k in range(4):
            I("s_sub_u32 s53, s%d, s60" % (68 + 2 * k)); I("v_mov_b32 v18, s53"); I("s_add_u32 s52, s52, 0x10000"); I("buffer_store_dword v18, v17, %s, s52 offen" % s(S_WS, 4)); I("s_nop 1")
    I("s_waitcnt vmcnt(0)")
    A.L(L("end")); I("s_endpgm")
    return A, kernel_desc(name, NV, 80, NV)

if __name__ == "__main__":
    import sys
    for a_ in sys.argv[1:]:
        if '=' in a_: OPT[a_.split('=')[0]] = a_.split('=')[1].replace('+', ' ')
        else: OPT[a_] = True
    A, desc = gen_p3(timing=True)
    p = Prog(A.lines)
    for e in p.check_hazards(): print(e)
    hdr = "; @launch kernel=p3_kernel grid=(256,1,1) block=(512,1,1) lds=131072\n.amdgcn_target \"amdgcn-amd-amdhsa--gfx950\"\n.text\n"
    open("p3.s", "w").write(hdr + A.text() + ".section .rodata,\"a\"\n.p2align 6\n" + desc + "\n")
    print("instrs:", len(p.ins))
```

```python
from asmlib import *
from layout import *
import math, struct
OPT = {}
TOFF = 96 << 20
def fbits(x): return struct.unpack("<I", struct.pack("<f", x))[0]
QSCALE = math.log2(math.e) / math.sqrt(128.0)
GC0 = -2.0 * math.log2(math.e) * math.sqrt(2.0 / math.pi)
GC1 = GC0 * 0.044715
V_L16 = 1; V_WOFF = 2; V_RC0 = 3; V_RC1 = 4; V_RN0 = 5; V_RN1 = 6; V_RB0 = 7; V_RB1 = 8
V_ST = 9
V_RSTD = 13
V_MR = 17
V_LANE = 21; V_G4 = 22
V_B1P = 176
V_ONES = 24
V_B1 = 28
V_B1F = 32
V_CS = 40
V_T = 48
V_ACC = 64
V_F = 96
V_PK = 128
V_H = 144
NV = 176
S_WS = 4; S_W = 8; S_X = 12; S_B1 = 16; S_GW = 20
S_UK = 24; S_UV = 26
S_C = 28; S_N = 29; S_CB = 30; S_PF = 31; S_STR16 = 32; S_ST = 33; S_STP = 34; S_WV = 35; S_MB = 36
S_T0 = 37; S_T1 = 38; S_T2 = 39; S_SOFF = 40; S_SC = 41; S_C0 = 42; S_C1 = 43; S_END = 44; S_KIND = 45; S_B1O = 46
S_M = 48

def X(rt, s_): return a((rt * 16 + s_) * 4, 4)
def acc(ct, rt): return V_ACC + (ct * 4 + rt) * 4
def fr(slot): return V_F + 4 * slot
def mf(d, A_, B_, c): return "v_mfma_f32_16x16x32_bf16 %s, %s, %s, %s" % (d, A_, B_, c)

def tr_reads(grp, nxt):
    ct = grp >> 2; s0 = (grp & 3) * 4
    base = (V_RN0 if nxt else V_RC0) + ct
    o = []
    for k in range(4):
        slot = (grp & 1) * 4 + k
        for h in range(2):
            o.append("ds_read_b64_tr_b16 %s, %s offset:%d" % (v(fr(slot) + 2 * h, 2), v(base), (s0 + k) * 2048 + h * 256))
    return o

def group_mfmas(kind, grp):
    ct = grp >> 2; s0 = (grp & 3) * 4
    o = []
    for rt in range(4):
        for k in range(4):
            s_ = s0 + k
            W = v(fr((grp & 1) * 4 + k), 4); d = v(acc(ct, rt), 4)
            c = "0" if s_ == 0 else d
            o.append(mf(d, X(rt, s_), W, c) if kind == "V" else mf(d, W, X(rt, s_), c))
    if kind == "H":
        for k in range(4):
            s_ = s0 + k
            W = v(fr((grp & 1) * 4 + k), 4); d = v(V_CS + ct * 4, 4)
            o.append(mf(d, W, v(V_ONES, 4), "0" if s_ == 0 else d))
    return o

def cvt(dst, a0, a1): return "v_cvt_pk_bf16_f32 %s, %s, %s" % (v(dst), v(a0), v(a1))
def store(src, vo, off=0): return "buffer_store_dwordx4 %s, %s, %s, %s offen offset:%d" % (v(src, 4), v(vo), s(S_WS, 4), "%s", off)

def gelu_tile(ct, rt, dst):
    o = []
    A_ = acc(ct, rt); T = V_H + (rt & 1) * 8
    for r in range(4):
        o.append("v_fma_f32 %s, -%s, %s, %s" % (v(T + r), v(V_CS + ct * 4 + r), v(V_MR + rt), v((V_B1F if ct == 0 else V_B1P) + r)))
    for r in range(4):
        o.append("v_fma_f32 %s, %s, %s, %s" % (v(A_ + r), v(A_ + r), v(V_RSTD + rt), v(T + r)))
    for r in range(4): o.append("v_mul_f32 %s, %s, %s" % (v(T + r), v(A_ + r), v(A_ + r)))
    for r in range(4): o.append("v_fma_f32 %s, %s, %s, %s" % (v(T + r), v(T + r), s(S_C1), v(V_T + 15)))
    for r in range(4): o.append("v_mul_f32 %s, %s, %s" % (v(T + r), v(T + r), v(A_ + r)))
    for r in range(4): o.append("v_exp_f32 %s, %s" % (v(T + r), v(T + r)))
    for r in range(4): o.append("v_add_f32 %s, 1.0, %s" % (v(T + r), v(T + r)))
    for r in range(4): o.append("v_rcp_f32 %s, %s" % (v(T + r), v(T + r)))
    for r in range(4): o.append("v_mul_f32 %s, %s, %s" % (v(A_ + r), v(A_ + r), v(T + r)))
    o.append(cvt(dst, A_, A_ + 1)); o.append(cvt(dst + 1, A_ + 2, A_ + 3))
    return o

def partA(kind):
    o = []
    if kind in ("K", "Q"):
        for rt in range(4):
            A_ = acc(0, rt)
            if kind == "Q":
                for r in range(4): o.append("v_mul_f32 %s, %s, %s" % (v(A_ + r), s(S_SC), v(A_ + r)))
            o += [cvt(V_PK + 4 * rt, A_, A_ + 1), cvt(V_PK + 4 * rt + 1, A_ + 2, A_ + 3)]
    elif kind == "V":
        for b in range(2):
            d = V_PK + 4 * b
            o += [cvt(d, acc(0, 2 * b), acc(0, 2 * b) + 1), cvt(d + 1, acc(0, 2 * b) + 2, acc(0, 2 * b) + 3),
                  cvt(d + 2, acc(0, 2 * b + 1), acc(0, 2 * b + 1) + 1), cvt(d + 3, acc(0, 2 * b + 1) + 2, acc(0, 2 * b + 1) + 3)]
            o.append(store(d, V_ST + b, 0) % s(S_ST))
    else:
        for r in range(4): o.append("v_mov_b32 %s, %s" % (v(V_B1P + r), v(V_B1F + 4 + r)))
        for rt in range(4):
            o += gelu_tile(0, rt, V_PK + 4 * rt)
    return o

def partB(kind):
    o = []
    if kind in ("K", "Q"):
        for rt in range(4):
            A_ = acc(1, rt)
            if kind == "Q":
                for r in range(4): o.append("v_mul_f32 %s, %s, %s" % (v(A_ + r), s(S_SC), v(A_ + r)))
            o += [cvt(V_PK + 4 * rt + 2, A_, A_ + 1), cvt(V_PK + 4 * rt + 3, A_ + 2, A_ + 3)]
            o.append(store(V_PK + 4 * rt, V_ST + rt, 0) % s(S_STP))
    elif kind == "V":
        for b in range(2):
            d = V_PK + 8 + 4 * b
            o += [cvt(d, acc(1, 2 * b), acc(1, 2 * b) + 1), cvt(d + 1, acc(1, 2 * b) + 2, acc(1, 2 * b) + 3),
                  cvt(d + 2, acc(1, 2 * b + 1), acc(1, 2 * b + 1) + 1), cvt(d + 3, acc(1, 2 * b + 1) + 2, acc(1, 2 * b + 1) + 3)]
            o.append(store(d, V_ST + b, 1024) % s(S_STP))
    else:
        for rt in range(4):
            o += gelu_tile(1, rt, V_PK + 4 * rt + 2)
            o.append(store(V_PK + 4 * rt, V_ST + rt, 0) % s(S_STP))
    return o

def spread(gaps, items, g0, g1):
    n = g1 - g0
    for i, it in enumerate(items):
        gaps[g0 + (i * n) // max(len(items), 1)].append(it)

def dma_w():
    pre = ["s_add_u32 %s, %s, 3" % (s(S_T0), s(S_C)),
           "s_and_b32 %s, %s, 3" % (s(S_T0), s(S_T0)),
           "s_lshl_b32 %s, %s, 15" % (s(S_T0), s(S_T0)),
           "s_lshl_b32 %s, %s, 13" % (s(S_T1), s(S_WV)),
           "s_add_u32 %s, %s, %s" % (s(S_T0), s(S_T0), s(S_T1))]
    grp = []
    for i in range(8):
        g = []
        if i == 0: g.append("s_mov_b32 m0, %s" % s(S_T0))
        else:
            g.append("s_add_u32 m0, m0, 1024")
        if i > 0: g.append("s_add_u32 %s, %s, %s" % (s(S_SOFF), s(S_SOFF), s(S_STR16)))
        else: g.append("s_nop 0")
        g.append("buffer_load_dwordx4 %s, %s, %s offen lds" % (v(V_WOFF), s(S_W, 4), s(S_SOFF)))
        grp.append(g)
    return pre, grp

def pf_setup(kind):
    o = []
    if kind == "KV":
        o += ["s_cmp_lt_u32 %s, 128" % s(S_PF),
              "s_cselect_b32 %s, %s, %s" % (s(S_W), s(S_UK), s(S_UV)),
              "s_cselect_b32 %s, %s, %s" % (s(S_W + 1), s(S_UK + 1), s(S_UV + 1)),
              "s_and_b32 %s, %s, 127" % (s(S_SOFF), s(S_PF)),
              "s_lshl_b32 %s, %s, 6" % (s(S_SOFF), s(S_SOFF))]
    else:
        o += ["s_lshl_b32 %s, %s, 6" % (s(S_SOFF), s(S_PF))]
    o += ["s_lshl_b32 %s, %s, 3" % (s(S_T2), s(S_STR16)),
          "s_mul_i32 %s, %s, %s" % (s(S_T2), s(S_T2), s(S_WV)),
          "s_add_u32 %s, %s, %s" % (s(S_SOFF), s(S_SOFF), s(S_T2)),
          "s_add_u32 %s, %s, 1" % (s(S_PF), s(S_PF))]
    return o

def st_setup(kind):
    o = ["s_mov_b32 %s, %s" % (s(S_STP), s(S_ST))]
    if kind == "K":
        o += ["s_lshr_b32 %s, %s, 2" % (s(S_T0), s(S_CB)), "s_lshl_b32 %s, %s, 20" % (s(S_T0), s(S_T0)),
              "s_and_b32 %s, %s, 3" % (s(S_T1), s(S_CB)), "s_lshl_b32 %s, %s, 10" % (s(S_T1), s(S_T1))]
    elif kind == "V":
        o += ["s_lshr_b32 %s, %s, 2" % (s(S_T0), s(S_CB)), "s_and_b32 %s, %s, 31" % (s(S_T0), s(S_T0)), "s_lshl_b32 %s, %s, 20" % (s(S_T0), s(S_T0)),
              "s_and_b32 %s, %s, 3" % (s(S_T1), s(S_CB)), "s_lshl_b32 %s, %s, 11" % (s(S_T1), s(S_T1)), "s_add_u32 %s, %s, 8192" % (s(S_T1), s(S_T1))]
    elif kind == "Q":
        o += ["s_lshr_b32 %s, %s, 2" % (s(S_T0), s(S_CB)), "s_lshl_b32 %s, %s, 19" % (s(S_T0), s(S_T0)),
              "s_and_b32 %s, %s, 3" % (s(S_T1), s(S_CB)), "s_lshl_b32 %s, %s, 10" % (s(S_T1), s(S_T1))]
    else:
        o += ["s_mov_b32 %s, 0" % s(S_T0), "s_lshl_b32 %s, %s, 10" % (s(S_T1), s(S_CB))]
    o += ["s_add_u32 %s, %s, %s" % (s(S_T0), s(S_T0), s(S_T1)), "s_add_u32 %s, %s, %s" % (s(S_ST), s(S_T0), s(S_END + 3))]
    return o
S_WB = S_END + 3

def b1_loads():
    return ["s_add_u32 %s, %s, 1" % (s(S_B1O), s(S_CB)), "s_lshl_b32 %s, %s, 6" % (s(S_B1O), s(S_B1O)),
            "buffer_load_dwordx2 %s, %s, %s, %s offen" % (v(V_B1, 2), v(V_T + 14), s(S_B1, 4), s(S_B1O)),
            "buffer_load_dwordx2 %s, %s, %s, %s offen offset:32" % (v(V_B1 + 2, 2), v(V_T + 14), s(S_B1, 4), s(S_B1O))]

def place(gaps, cap, items, g0, g1, step=None):
    n = len(items)
    if n == 0: return
    g = g0
    for i, it in enumerate(items):
        lst = it if isinstance(it, list) else [it]
        want = g0 + (i * (g1 - g0)) // n
        g = max(g, want)
        while g < len(gaps) - 1 and cap[g] < min(len(lst), 2): g += 1
        gaps[g] += lst; cap[g] -= len(lst)

def body(kind, pfkind):
    o = ["s_waitcnt vmcnt(12)", "s_barrier"]
    pre, dg = dma_w()
    mf_all = []
    for grp in range(8): mf_all += group_mfmas(kind, grp)
    per = len(mf_all) // 8; n = len(mf_all)
    gaps = [[] for _ in range(n)]; cap = [2 if kind != "H" else 4] * n
    for grp in range(8):
        rds = tr_reads((grp + 1) % 8, grp == 7)
        for k, r_ in enumerate(rds):
            gaps[grp * per + k].append(r_); cap[grp * per + k] -= 1
    pB = partB(kind); pA = partA(kind)
    head = st_setup(kind)
    if kind == "H":
        unp = []
        for ct in range(2):
            for k in range(2):
                unp.append("v_lshlrev_b32 %s, 16, %s" % (v(V_B1F + ct * 4 + 2 * k), v(V_B1 + ct * 2 + k)))
                unp.append("v_and_b32 %s, 0xffff0000, %s" % (v(V_B1F + ct * 4 + 2 * k + 1), v(V_B1 + ct * 2 + k)))
        head = unp + b1_loads() + head
    head = head + pf_setup(pfkind) + pre
    hg = 0
    for x in head:
        while cap[hg] < 1 or (kind == "H" and len(gaps[hg]) >= 2): hg += 1
        gaps[hg].append(x); cap[hg] -= 1
    for i, g in enumerate(dg):
        gi = max(hg + 1, i * per + 9) if i > 0 else hg + 1
        if i > 0: gi = max(gi, lastg + 2)
        gaps[gi] += g[:2]; cap[gi] -= 2
        gaps[gi + 1] += g[2:]; cap[gi + 1] -= 1
        lastg = gi + 1
    first_b = 3 if kind != "H" else max(hg + 1, 6)
    place(gaps, cap, pB, first_b, 4 * per - 2)
    place(gaps, cap, pA, 4 * per + (3 if kind != "H" else 6), 8 * per - 8)
    adv = ["s_add_u32 %s, %s, 1" % (s(S_C), s(S_C)), "s_add_u32 %s, %s, 1" % (s(S_CB), s(S_CB)),
           "s_add_u32 %s, %s, 1" % (s(S_T0), s(S_C)), "s_and_b32 %s, %s, 3" % (s(S_T0), s(S_T0)), "s_lshl_b32 %s, %s, 15" % (s(S_T0), s(S_T0)),
           "v_mov_b32 %s, %s" % (v(V_RC0), v(V_RN0)), "v_mov_b32 %s, %s" % (v(V_RC1), v(V_RN1)),
           "v_add_u32 %s, %s, %s" % (v(V_RN0), s(S_T0), v(V_RB0)), "v_add_u32 %s, %s, %s" % (v(V_RN1), s(S_T0), v(V_RB1)),
           "s_cmp_lt_u32 %s, %s" % (s(S_CB), s(S_END))]
    ag = 7 * per + 8
    for x in adv:
        while cap[ag] < 1 and ag < n - 1: ag += 1
        gaps[ag].append(x); cap[ag] -= 1
    for grp in range(8):
        if OPT.get("gt"):
            o.append("s_memtime s[92:93]")
        o.append("s_waitcnt lgkmcnt(0)")
        if OPT.get("gt"):
            o.append("s_sub_u32 s93, s92, s94"); o.append("s_mov_b32 s94, s92")
            o.append("s_add_u32 s%d, s%d, s93" % (80 + grp, 80 + grp))
        for i in range(per):
            o.append(mf_all[grp * per + i]); o += gaps[grp * per + i]
    if OPT.get("nodma"): o = [x for x in o if not (x.startswith("buffer_load") and x.endswith("lds"))]
    if OPT.get("nostore"): o = [x for x in o if not x.startswith("buffer_store")]
    return o

def segment(A, L, kind, pfkind, tag):
    I = A.I
    I("s_cmp_ge_u32 %s, %s" % (s(S_CB), s(S_END))); I("s_cbranch_scc1 %s" % L(tag + "_skip"))
    I("s_mov_b32 %s, 0x10000000" % s(S_ST))
    A.L(L(tag + "_loop"))
    A.ext(body(kind, pfkind))
    I("s_cbranch_scc1 %s" % L(tag + "_loop"))
    I("s_mov_b32 %s, %s" % (s(S_STP), s(S_ST)))
    I("s_nop 7")
    A.ext(partB(kind))
    A.L(L(tag + "_skip"))

def gen_p1(name="p1_kernel", timing=False):
    A = Asm(); A.ext(kernel_header(name)); L = lambda x: name + "_" + x; I = A.I
    def stamp(k):
        if timing:
            I("s_memtime s[%d:%d]" % (80 + 2 * k, 81 + 2 * k)); I("s_waitcnt lgkmcnt(0)")
    I("s_cmp_ge_u32 s2, 256"); I("s_cbranch_scc1 %s" % L("end"))
    I("s_load_dwordx2 s[4:5], s[0:1], 112")
    I("s_load_dwordx4 s[56:59], s[0:1], 0")
    I("s_load_dwordx4 s[60:63], s[0:1], 16")
    I("s_load_dwordx2 s[26:27], s[0:1], 32")
    I("s_load_dwordx4 s[64:67], s[0:1], 56")
    I("s_load_dwordx2 s[20:21], s[0:1], 88")
    if timing:
        I("s_memtime s[70:71]"); I("s_memrealtime s[74:75]")
    I("v_lshrrev_b32 v48, 6, v0"); I("v_and_b32 v21, 63, v0"); I("v_lshrrev_b32 v22, 4, v21")
    I("v_readfirstlane_b32 %s, v48" % s(S_WV))
    I("v_lshlrev_b32 %s, 4, v21" % v(V_L16))
    I("s_and_b32 s68, s2, 7"); I("s_lshr_b32 s69, s2, 3")
    I("s_lshr_b32 %s, s68, 2" % s(S_MB)); I("s_lshl_b32 %s, %s, 2" % (s(S_MB), s(S_MB))); I("s_and_b32 s78, s69, 3"); I("s_add_u32 %s, %s, s78" % (s(S_MB), s(S_MB)))
    I("s_and_b32 s68, s68, 3"); I("s_lshl_b32 s68, s68, 3"); I("s_lshr_b32 s69, s69, 2"); I("s_add_u32 s68, s68, s69")
    I("s_waitcnt lgkmcnt(0)")
    I("s_and_b32 s5, s5, 0xffff"); I("s_mov_b32 s6, 0x%x" % WS_BYTES); I("s_mov_b32 s7, 0x00020000")
    I("s_mov_b32 s24, s62"); I("s_and_b32 s25, s63, 0xffff"); I("s_and_b32 s27, s27, 0xffff")
    I("s_and_b32 s21, s21, 0xffff"); I("s_mov_b32 s22, 1024"); I("s_mov_b32 s23, 0x00020000")
    I("s_mov_b32 s16, s66"); I("s_and_b32 s17, s67, 0xffff"); I("s_mov_b32 s18, 2752"); I("s_mov_b32 s19, 0x00020000")
    I("s_mov_b32 s14, 0x200000"); I("s_mov_b32 s15, 0x00020000"); I("s_mov_b32 s11, 0x00020000")
    I("s_cmp_ge_u32 s2, 64"); I("s_cbranch_scc1 %s" % L("noflag"))
    I("s_cmp_lg_u32 %s, 0" % s(S_WV)); I("s_cbranch_scc1 %s" % L("noflag"))
    I("v_mov_b32 v50, 0"); I("v_mov_b32 v51, 0"); I("v_mov_b32 v52, 0"); I("v_mov_b32 v53, 0"); I("v_mov_b32 v54, 0")
    I("s_lshl_b32 s69, s2, 8"); I("s_add_u32 s69, s69, 0x%x" % FLAG_OFF)
    I("v_cmp_eq_u32 vcc, 0, v21"); I("s_and_saveexec_b64 s[72:73], vcc")
    I("buffer_store_dwordx4 v[50:53], v54, %s, s69 offen" % s(S_WS, 4))
    I("s_mov_b64 exec, s[72:73]")
    A.L(L("noflag"))
    I("s_cmp_lt_u32 s68, 18"); I("s_cbranch_scc1 %s" % L("role_kv"))
    I("s_cmp_lt_u32 s68, 27"); I("s_cbranch_scc1 %s" % L("role_q"))
    I("s_sub_u32 s68, s68, 27")
    I("s_mul_i32 %s, s68, 9" % s(S_CB)); I("s_sub_u32 s69, s68, 3"); I("s_max_i32 s69, s69, 0"); I("s_sub_u32 %s, %s, s69" % (s(S_CB), s(S_CB)))
    I("s_cmp_ge_u32 s68, 3"); I("s_cselect_b32 %s, 8, 9" % s(S_N))
    I("s_mov_b32 %s, 2" % s(S_KIND))
    I("s_mov_b32 s8, s64"); I("s_and_b32 s9, s65, 0xffff"); I("s_mov_b32 s10, %d" % (512 * 2752))
    I("s_mov_b32 %s, %d" % (s(S_STR16), 16 * 2752))
    I("s_mov_b32 s12, s56"); I("s_and_b32 s13, s57, 0xffff")
    I("s_branch %s" % L("role_j"))
    A.L(L("role_q"))
    I("s_sub_u32 s68, s68, 18")
    I("s_mul_i32 %s, s68, 14" % s(S_CB)); I("s_min_u32 s69, s68, 2"); I("s_add_u32 %s, %s, s69" % (s(S_CB), s(S_CB)))
    I("s_cmp_lt_u32 s68, 2"); I("s_cselect_b32 %s, 15, 14" % s(S_N))
    I("s_mov_b32 %s, 1" % s(S_KIND))
    I("s_mov_b32 s8, s60"); I("s_and_b32 s9, s61, 0xffff"); I("s_mov_b32 s10, 0x400000")
    I("s_mov_b32 %s, %d" % (s(S_STR16), 16 * 8192))
    I("s_mov_b32 s12, s56"); I("s_and_b32 s13, s57, 0xffff")
    I("s_branch %s" % L("role_j"))
    A.L(L("role_kv"))
    I("s_mul_i32 %s, s68, 14" % s(S_CB)); I("s_min_u32 s69, s68, 4"); I("s_add_u32 %s, %s, s69" % (s(S_CB), s(S_CB)))
    I("s_cmp_lt_u32 s68, 4"); I("s_cselect_b32 %s, 15, 14" % s(S_N))
    I("s_mov_b32 %s, 0" % s(S_KIND))
    I("s_mov_b32 s8, s24"); I("s_mov_b32 s9, s25"); I("s_mov_b32 s10, 0x400000")
    I("s_mov_b32 %s, %d" % (s(S_STR16), 16 * 8192))
    I("s_mov_b32 s12, s58"); I("s_and_b32 s13, s59, 0xffff")
    A.L(L("role_j"))
    I("s_lshr_b32 s69, %s, 4" % s(S_STR16))
    I("v_lshrrev_b32 v50, 2, v21"); I("v_mul_lo_u32 v50, v50, s69")
    if OPT.get("wswz"):
        I("v_lshrrev_b32 v51, 5, v21"); I("v_lshlrev_b32 v51, 1, v51"); I("v_and_b32 v52, 3, v21"); I("v_xor_b32 v51, v51, v52")
    else:
        I("v_and_b32 v51, 3, v21")
    I("v_lshlrev_b32 v51, 4, v51"); I("v_add_u32 %s, v50, v51" % v(V_WOFF))
    I("v_lshrrev_b32 v50, 4, v21"); I("v_and_b32 v51, 15, v21")
    I("v_lshlrev_b32 v52, 3, v50"); I("v_lshrrev_b32 v53, 2, v51"); I("v_add_u32 v52, v52, v53"); I("v_lshlrev_b32 v52, 6, v52")
    I("v_bfe_u32 v53, v51, 1, 1")
    if OPT.get("wswz"):
        I("v_and_b32 v54, 1, v50"); I("v_lshlrev_b32 v54, 1, v54"); I("v_xor_b32 v53, v53, v54")
    I("v_lshlrev_b32 v53, 4, v53")
    I("v_add_u32 v52, v52, v53"); I("v_and_b32 v53, 1, v51"); I("v_lshlrev_b32 v53, 3, v53"); I("v_add_u32 %s, v52, v53" % v(V_RB0))
    I("v_xor_b32 %s, 32, %s" % (v(V_RB1), v(V_RB0)))
    I("v_mov_b32 %s, %s" % (v(V_RC0), v(V_RB0))); I("v_mov_b32 %s, %s" % (v(V_RC1), v(V_RB1)))
    I("v_add_u32 %s, 0x8000, %s" % (v(V_RN0), v(V_RB0))); I("v_add_u32 %s, 0x8000, %s" % (v(V_RN1), v(V_RB1)))
    I("v_lshlrev_b32 %s, 3, v50" % v(V_T + 14))
    I("s_mov_b32 %s, %s" % (s(S_PF), s(S_CB)))
    def issue_w(cval, kindreg_dispatch=True):
        I("s_mov_b32 %s, %d" % (s(S_C), cval))
        I("s_cmp_eq_u32 %s, 0" % s(S_KIND)); I("s_cbranch_scc0 %s" % L("pf_o%d" % (cval + 3)))
        A.ext(pf_setup("KV")); I("s_branch %s" % L("pf_j%d" % (cval + 3)))
        A.L(L("pf_o%d" % (cval + 3))); A.ext(pf_setup("O")); A.L(L("pf_j%d" % (cval + 3)))
        pre, dg = dma_w(); A.ext(pre)
        for g in dg: A.ext(g)
    stamp(0)
    I("s_mov_b32 s98, 0"); I("s_mov_b32 s99, 0")
    issue_w(-3)
    stamp(1)
    I("v_lshrrev_b32 v50, 3, v21"); I("v_lshlrev_b32 v50, 10, v50")
    I("v_and_b32 v51, 7, v21"); I("v_xor_b32 v51, v51, v22"); I("v_lshlrev_b32 v53, 4, v51")
    I("v_add_u32 v56, v50, v53"); I("v_xor_b32 v57, 64, v56")
    I("s_lshl_b32 s68, %s, 8" % s(S_MB)); I("s_lshl_b32 s69, %s, 6" % s(S_WV)); I("s_add_u32 s68, s68, s69"); I("s_lshl_b32 s68, s68, 10")
    I("s_lshl_b32 s69, %s, 15" % s(S_WV)); I("s_add_u32 s69, s69, 0x8000")
    I("v_and_b32 v50, 15, v21"); I("v_lshlrev_b32 v51, 7, v50"); I("v_lshrrev_b32 v52, 1, v50"); I("v_xor_b32 v52, v52, v22")
    I("v_lshlrev_b32 v52, 4, v52"); I("v_add_u32 v58, v51, v52"); I("v_add_u32 v58, s69, v58"); I("v_xor_b32 v59, 64, v58")
    def xdma(p):
        for q in range(8):
            I("s_add_u32 m0, s69, %d" % ((p % 4) * 8192 + q * 1024))
            I("s_add_u32 %s, s68, %d" % (s(S_T0), q * 8192 + p * 128))
            I("buffer_load_dwordx4 %s, %s, %s offen lds" % ("v56" if q % 2 == 0 else "v57", s(S_X, 4), s(S_T0)))
    for p in range(4): xdma(p)
    stamp(2)
    for p in range(8):
        younger = min(3, 7 - p) * 8
        I("s_waitcnt vmcnt(%d)" % younger)
        for rt in range(4):
            for sl in range(2):
                I("ds_read_b128 %s, %s offset:%d" % (X(rt, 2 * p + sl), "v58" if sl == 0 else "v59", (p % 4) * 8192 + rt * 2048))
        if p + 4 < 8:
            I("s_waitcnt lgkmcnt(0)")
            xdma(p + 4)
    I("s_waitcnt lgkmcnt(0)")
    stamp(3)
    I("s_barrier")
    issue_w(-2); issue_w(-1)
    stamp(4)
    I("s_mov_b32 %s, 0" % s(S_C))
    I("s_add_u32 %s, %s, %s" % (s(S_END), s(S_CB), s(S_N)))
    I("s_lshl_b32 s68, %s, 4" % s(S_MB)); I("s_lshl_b32 s69, %s, 2" % s(S_WV)); I("s_add_u32 s68, s68, s69")
    I("s_cmp_eq_u32 %s, 1" % s(S_KIND)); I("s_cbranch_scc1 %s" % L("run_q"))
    I("s_cmp_eq_u32 %s, 2" % s(S_KIND)); I("s_cbranch_scc1 %s" % L("run_h"))
    I("s_lshl_b32 %s, s68, 13" % s(S_WB)); I("s_add_u32 %s, %s, 0x%x" % (s(S_WB), s(S_WB), KV_OFF))
    def first_reads():
        I("s_waitcnt vmcnt(8)")
        I("s_barrier")
        A.ext(tr_reads(0, False))
    first_reads()
    stamp(5)
    if OPT.get("gt"):
        for k in range(8): I("s_mov_b32 s%d, 0" % (80 + k))
        I("s_memtime s[94:95]"); I("s_waitcnt lgkmcnt(0)")
    I("s_mov_b32 s69, %s" % s(S_END)); I("s_min_u32 %s, %s, 128" % (s(S_END), s(S_END)))
    for rt in range(4): I("v_add_u32 %s, %d, %s" % (v(V_ST + rt), (rt >> 1) * 16384 + (rt & 1) * 4096, v(V_L16)))
    segment(A, L, "K", "KV", "segk")
    I("s_mov_b32 %s, s69" % s(S_END))
    for b in range(2): I("v_add_u32 %s, %d, %s" % (v(V_ST + b), b * 16384, v(V_L16)))
    segment(A, L, "V", "KV", "segv")
    I("s_branch %s" % L("done"))
    A.L(L("run_q"))
    I("s_lshl_b32 %s, s68, 12" % s(S_WB))
    if QF_OFF: I("s_add_u32 %s, %s, 0x%x" % (s(S_WB), s(S_WB), QF_OFF))
    I("s_mov_b32 %s, 0x%x" % (s(S_SC), fbits(QSCALE)))
    for rt in range(4): I("v_add_u32 %s, %d, %s" % (v(V_ST + rt), rt * 4096, v(V_L16)))
    first_reads()
    segment(A, L, "Q", "O", "segq")
    I("s_branch %s" % L("done"))
    A.L(L("run_h"))
    I("s_mul_i32 %s, s68, %d" % (s(S_WB), NSLAB * 1024)); I("s_add_u32 %s, %s, 0x%x" % (s(S_WB), s(S_WB), AM_OFF + 128 * 1024))
    for rt in range(4): I("v_add_u32 %s, %d, %s" % (v(V_ST + rt), rt * NSLAB * 1024, v(V_L16)))
    I("s_mov_b32 %s, 0x%x" % (s(S_C1), fbits(GC1))); I("v_mov_b32 %s, 0x%x" % (v(V_T + 15), fbits(GC0)))
    for r in range(4): I("v_mov_b32 %s, 0x3f803f80" % v(V_ONES + r))
    I("v_lshlrev_b32 v51, 4, v22")
    I("v_and_b32 v52, 8, v21"); I("v_cmp_eq_u32 %s, 0, v52" % s(S_M, 2))
    G = V_H
    for s_ in range(16):
        I("buffer_load_dwordx4 %s, v51, %s, 0 offen offset:%d" % (v(G + 4 * s_, 4), s(S_GW, 4), s_ * 64))
    I("s_waitcnt vmcnt(0)")
    for s_ in range(16):
        for r in range(4):
            I("v_cndmask_b32 %s, %s, %s, %s" % (v(G + 4 * s_ + r), v(G + 4 * s_ + r), v(V_ONES), s(S_M, 2)))
    I("s_nop 1")
    for rt in range(4):
        for s_ in range(16):
            d = v(V_ACC + 4 * rt, 4); I(mf(d, v(G + 4 * s_, 4), X(rt, s_), "0" if s_ == 0 else d))
        for s_ in range(16):
            d = v(V_ACC + 16 + 4 * rt, 4); I(mf(d, X(rt, s_), X(rt, s_), "0" if s_ == 0 else d))
    I("s_nop 7")
    I("v_and_b32 v52, 3, v21")
    for r in range(1, 4): I("v_cmp_eq_u32 %s, %d, v52" % (s(S_M + 2 * r, 2), r))
    I("v_bfe_u32 v53, v21, 2, 2"); I("v_cmp_eq_u32 vcc, v53, v22")
    import gen_p2
    for rt in range(4):
        sq = V_ACC + 16 + 4 * rt; st = V_ACC + 4 * rt
        t0, t1, t2 = v(V_T), v(V_T + 1), v(V_T + 2)
        I("v_mov_b32 %s, %s" % (t0, v(sq)))
        for r in range(1, 4): I("v_cndmask_b32 %s, %s, %s, %s" % (t0, t0, v(sq + r), s(S_M + 2 * r, 2)))
        I("v_cndmask_b32 %s, 0, %s, vcc" % (t0, t0))
        A.ext(gen_p2.xreduce("v_add_f32", t0, t1))
        I("v_mov_b32 %s, %s" % (t1, v(st))); I("v_mov_b32 %s, %s" % (t2, v(st))); I("s_nop 1")
        I("v_permlane32_swap_b32 %s, %s" % (t1, t2))
        I("s_nop 1")
        I("v_mul_f32 %s, 0x%x, %s" % (t1, fbits(1.0 / 512), t1))
        I("v_mul_f32 %s, 0x%x, %s" % (t0, fbits(1.0 / 512), t0))
        I("v_fma_f32 %s, -%s, %s, %s" % (t0, t1, t1, t0))
        I("v_max_f32 %s, 0, %s" % (t0, t0))
        I("v_add_f32 %s, 0x%x, %s" % (t0, fbits(1e-5), t0))
        I("v_rsq_f32 %s, %s" % (v(V_RSTD + rt), t0)); I("s_nop 1")
        I("v_mul_f32 %s, %s, %s" % (v(V_MR + rt), t1, v(V_RSTD + rt)))
        I("v_mul_f32 %s, 0x%x, %s" % (t2, fbits(-math.log2(math.e)), t2))
        I("v_exp_f32 %s, %s" % (t2, t2)); I("s_nop 1"); I("v_add_f32 %s, 1.0, %s" % (t2, t2)); I("v_rcp_f32 %s, %s" % (v(V_T + 4 + rt), t2))
    I("s_cmp_lg_u32 %s, 0" % s(S_CB)); I("s_cbranch_scc1 %s" % L("h_nog"))
    I("v_and_b32 v56, 15, v21"); I("v_lshlrev_b32 v56, 2, v56")
    I("s_lshl_b32 s69, s68, 6"); I("s_add_u32 s69, s69, 0x%x" % G_OFF)
    I("v_cmp_gt_u32 vcc, 16, v21"); I("s_and_saveexec_b64 s[72:73], vcc")
    for rt in range(4): I("buffer_store_dword %s, v56, %s, s69 offen offset:%d" % (v(V_T + 4 + rt), s(S_WS, 4), rt * 64))
    I("s_mov_b64 exec, s[72:73]")
    A.L(L("h_nog"))
    I("s_sub_u32 %s, %s, 1" % (s(S_CB), s(S_CB))); A.ext(b1_loads()); I("s_add_u32 %s, %s, 1" % (s(S_CB), s(S_CB)))
    I("s_waitcnt vmcnt(0)")
    I("s_barrier")
    A.ext(tr_reads(0, False))
    segment(A, L, "H", "O", "segh")
    A.L(L("done"))
    if timing:
        I("s_waitcnt vmcnt(0)")
        I("s_memtime s[72:73]"); I("s_memrealtime s[76:77]"); I("s_waitcnt lgkmcnt(0)")
        I("s_sub_u32 s76, s76, s74"); I("s_sub_u32 s72, s72, s70")
        I("s_lshl_b32 s68, s2, 3"); I("s_add_u32 s68, s68, %s" % s(S_WV)); I("s_lshl_b32 s68, s68, 2"); I("s_add_u32 s68, s68, 0x%x" % (96 << 20))
        I("v_mov_b32 v50, s72"); I("v_mov_b32 v51, 0"); I("buffer_store_dword v50, v51, %s, s68 offen" % s(S_WS, 4))
        I("v_mov_b32 v52, s76"); I("s_add_u32 s68, s68, 0x10000"); I("buffer_store_dword v52, v51, %s, s68 offen" % s(S_WS, 4))
        I("v_mov_b32 v52, s74"); I("s_add_u32 s68, s68, 0x10000"); I("buffer_store_dword v52, v51, %s, s68 offen" % s(S_WS, 4))
        if OPT.get("wt"):
            I("s_add_u32 s88, s98, s70"); I("s_add_u32 s86, s99, s70")
        for k in range(8 if OPT.get("gt") else 0):
            I("v_mov_b32 v52, s%d" % (80 + k)); I("s_add_u32 s68, s68, 0x10000"); I("buffer_store_dword v52, v51, %s, s68 offen" % s(S_WS, 4)); I("s_nop 1")
        for k in range(6 if not OPT.get("gt") else 0):
            I("s_sub_u32 s69, s%d, s70" % (80 + 2 * k)); I("v_mov_b32 v52, s69"); I("s_add_u32 s68, s68, 0x10000"); I("buffer_store_dword v52, v51, %s, s68 offen" % s(S_WS, 4)); I("s_nop 1")
    I("s_waitcnt vmcnt(0)")
    A.L(L("end")); I("s_endpgm")
    return A, kernel_desc(name, 256 + 256, 100, 256)

if __name__ == "__main__":
    import sys
    for a_ in sys.argv[1:]: OPT[a_] = True
    A, desc = gen_p1(timing=True)
    p = Prog(A.lines)
    for e in p.check_hazards(): print(e)
    hdr = "; @launch kernel=p1_kernel grid=(256,1,1) block=(256,1,1) lds=163840\n.amdgcn_target \"amdgcn-amd-amdhsa--gfx950\"\n.text\n"
    open("p1.s", "w").write(hdr + A.text() + ".section .rodata,\"a\"\n.p2align 6\n" + desc + "\n")
    print("instrs:", len(p.ins))
```

```python
from asmlib import *
from layout import *
OPT = {}
TOFF = 96 << 20
V_L16 = 1
V_VA = 2
V_KA = 3
V_L = 4
V_T = 8
V_G = 16
V_THR = 18
V_NEG = 19
V_X = 20
V_Q = 32
V_O = 64
V_SA = 128
V_SB = 144
V_CA = 160
V_CB = 176
V_F = 192
V_P = 224
NV = 232
S_WS = 4
S_T = 8; S_TL = 9; S_NT2 = 10; S_GRP = 11; S_H = 12; S_KVB = 13; S_TMP = 15; S_TMP2 = 16; S_LW = 17; S_TB = 18; S_THR = 19
S_M = 20
S_SOFF = 28

def mf(d, a_, b_, c_):
    c = c_ if isinstance(c_, str) else v(c_, 4)
    return "v_mfma_f32_16x16x32_bf16 %s, %s, %s, %s" % (v(d, 4), v(a_, 4), v(b_, 4), c)
def fr(slot): return V_F + 4 * slot
def rd(slot, base, off): return "ds_read_b128 %s, %s offset:%d" % (v(fr(slot), 4), v(base), off)
def koff(par, kt, s_): return par * 16384 + (kt * 4 + s_) * 1024
def voff(par, dt): return par * 16384 + 8192 + dt * 1024

def period(par, slow_label=None, do_qk=True, do_tree=True, do_kpre=True, kbase_a=None, kbase_pre=None):
    X = V_SA if par == 0 else V_SB
    Y = V_SB if par == 0 else V_SA
    CY = V_CB if par == 0 else V_CA
    npar = 1 - par
    kb_cur = V_VA if par == 0 else V_KA
    if kbase_a is not None: kb_cur = kbase_a
    kb_pre = V_KA if kbase_pre is None else kbase_pre
    x = lambda kt, qt, r: v(X + (kt * 2 + qt) * 4 + r)
    y = lambda kt, qt, r: v(Y + (kt * 2 + qt) * 4 + r)
    ex = lambda kt, qt, r: "v_exp_f32 %s, %s" % (x(kt, qt, r), x(kt, qt, r))
    cv = lambda qt, k: "v_cvt_pk_bf16_f32 %s, %s, %s" % (v(V_P + 4 * qt + k), x(k >> 1, qt, 2 * (k & 1)), x(k >> 1, qt, 2 * (k & 1) + 1))
    ad = lambda kt, qt, r: "v_add_f32 %s, %s, %s" % (v(V_L + 2 * qt + (r & 1)), v(V_L + 2 * qt + (r & 1)), x(kt, qt, r))
    t = lambda i: v(V_T + i)
    m3 = lambda d, a_, b_, c_: "v_max3_f32 %s, %s, %s, %s" % (d, a_, b_, c_)
    A = []
    mA = []
    for kt in range(2):
        for qt in range(2):
            for s_ in range(4):
                d = Y + (kt * 2 + qt) * 4
                mA.append(mf(d, fr(kt * 4 + s_), V_Q + (qt * 4 + s_) * 4, (CY + (kt * 2 + qt) * 4) if s_ == 0 else d))
    exps = [(kt, qt, r) for qt in range(2) for kt in range(2) for r in range(4)]
    FA = [[] for _ in range(16)]
    for n in range(16):
        FA[n].append(ex(*exps[n]))
    FA[3].append(cv(0, 0)); FA[5].append(cv(0, 1)); FA[7].append(cv(0, 2)); FA[9].append(cv(0, 3))
    FA[11].append(cv(1, 0)); FA[13].append(cv(1, 1)); FA[15].append(cv(1, 2))
    tailA = [cv(1, 3)]
    if do_qk:
        for n in range(4):
            FA[2 * n].insert(0, rd(4 + n, kb_cur, koff(npar, 1, n)))
    for n in range(4):
        FA[8 + 2 * n].insert(0, rd(n, V_VA, voff(par, n)))
    for n in range(16):
        A.append((mA[n] if do_qk else None, FA[n]))
    mB = []
    for dt in range(8):
        for qt in range(2):
            d = V_O + (dt * 2 + qt) * 4
            mB.append(mf(d, fr(dt), V_P + 4 * qt, d))
    FB = [[] for _ in range(16)]
    FB[0] = list(tailA)
    adds = [(kt, qt, r) for kt in range(2) for r in range(4) for qt in range(2)]
    for n in range(16): FB[n].append(ad(*adds[n]))
    if do_tree:
        FB[4].append(m3(t(0), y(0, 0, 0), y(0, 0, 1), y(0, 0, 2)))
        FB[5].append(m3(t(1), y(0, 1, 0), y(0, 1, 1), y(0, 1, 2)))
        FB[6].append(m3(t(2), y(0, 0, 3), y(1, 0, 0), y(1, 0, 1)))
        FB[7].append(m3(t(3), y(0, 1, 3), y(1, 1, 0), y(1, 1, 1)))
        FB[8].append(m3(t(0), t(0), y(1, 0, 2), y(1, 0, 3)))
        FB[9].append(m3(t(1), t(1), y(1, 1, 2), y(1, 1, 3)))
        FB[10].append("v_max_f32 %s, %s, %s" % (t(0), t(0), t(2)))
        FB[11].append("v_max_f32 %s, %s, %s" % (t(1), t(1), t(3)))
        FB[12].append("v_max_f32 %s, %s, %s" % (t(2), t(0), t(1)))
        FB[13].append("v_cmp_lt_f32 vcc, %s, %s" % (s(S_THR), t(2)))
    for n in range(4):
        FB[2 * n].insert(0, rd(4 + n, V_VA, voff(par, 4 + n)))
    if do_kpre:
        for n in range(4):
            FB[8 + 2 * n].insert(0, rd(n, kb_pre, koff(par, 0, n)))
    B = [(mB[n], FB[n]) for n in range(16)]
    A[15][1].append(B[0][1].pop(1 if B[0][1][0].startswith("ds_read") else 0))
    if do_tree:
        B[15][1].append("s_cbranch_vccnz %s" % slow_label)
        B[15][1].append(slow_label + "_ret:")
    return A + B

def flatten(groups):
    o = []
    for m, fl in groups:
        if m: o.append(m)
        o.extend(fl)
    return o

def add_waits(stream, pending, look=1):
    out = []; q = list(pending)
    for i, t in enumerate(stream):
        if t.startswith("v_mfma"):
            ins = Ins(t, 0)
            need = [r for r in q if ("v", r) in ins.srcAB]
            if need:
                cover = list(need); cnt = 0
                for t2 in stream[i + 1:]:
                    if t2.startswith("v_mfma"):
                        i2 = Ins(t2, 0)
                        cover += [r for r in q if ("v", r) in i2.srcAB]
                        cnt += 1
                        if cnt >= look: break
                last = max(q.index(r) for r in cover)
                out.append("s_waitcnt lgkmcnt(%d)" % (len(q) - 1 - last))
                q = q[last + 1:]
        if t.startswith("ds_read"):
            q.append(min(r[1] for r in Ins(t, 0).wr))
        out.append(t)
    return out, q

def xreduce(op, reg, tmp):
    return ["v_mov_b32 %s, %s" % (tmp, reg), "s_nop 1", "v_permlane32_swap_b32 %s, %s" % (reg, tmp), "s_nop 1",
            "%s %s, %s, %s" % (op, reg, reg, tmp),
            "v_mov_b32 %s, %s" % (tmp, reg), "s_nop 1", "v_permlane16_swap_b32 %s, %s" % (reg, tmp), "s_nop 1",
            "%s %s, %s, %s" % (op, reg, reg, tmp)]

def slow_path(name, par):
    Y = V_SB if par == 0 else V_SA
    o = [name + ":", "s_nop 15"]
    t = lambda i: v(V_T + i)
    for qt in range(2):
        o += xreduce("v_max_f32", t(qt), t(4))
        o += ["v_max_f32 %s, 0, %s" % (t(qt), t(qt)), "v_sub_f32 %s, 0, %s" % (t(2 + qt), t(qt)),
              "v_exp_f32 %s, %s" % (t(2 + qt), t(2 + qt)), "s_nop 1"]
    for dt in range(8):
        for qt in range(2):
            for r in range(4):
                x = v(V_O + (dt * 2 + qt) * 4 + r)
                o.append("v_mul_f32 %s, %s, %s" % (x, x, t(2 + qt)))
    for qt in range(2):
        for k in range(2):
            o.append("v_mul_f32 %s, %s, %s" % (v(V_L + 2 * qt + k), v(V_L + 2 * qt + k), t(2 + qt)))
    for kt in range(2):
        for qt in range(2):
            for r in range(4):
                i = (kt * 2 + qt) * 4 + r
                for b in (Y, V_CA, V_CB):
                    o.append("v_sub_f32 %s, %s, %s" % (v(b + i), v(b + i), t(qt)))
    o += ["s_nop 1", "s_branch %s_ret" % name]
    return o

def mask_block(b):
    C = V_CA if b == 0 else V_CB
    items = []
    for kt in range(2):
        for qt in range(2):
            for r in range(4):
                items.append((C + (kt * 2 + qt) * 4 + r, 32 * b + 16 * kt + r - 16 * qt))
    o = []
    for g in range(0, 16, 4):
        for k in range(4):
            o.append("v_cmp_le_i32 %s, %d, %s" % (s(S_M + 2 * k, 2), items[g + k][1], v(V_THR)))
        for k in range(4):
            o.append("v_cndmask_b32 %s, %s, %s, %s" % (v(items[g + k][0]), v(V_NEG), v(items[g + k][0]), s(S_M + 2 * k, 2)))
    o.append("s_nop 1")
    return o

def dma_block():
    o = []
    o.append("s_add_u32 %s, %s, 3" % (s(S_TMP), s(S_T)))
    o.append("s_lshl_b32 %s, %s, 15" % (s(S_SOFF), s(S_TMP)))
    if OPT.get("sametile"): o.append("s_and_b32 %s, %s, 0x18000" % (s(S_SOFF), s(S_SOFF)))
    o.append("s_add_u32 %s, %s, %s" % (s(S_SOFF), s(S_SOFF), s(S_KVB)))
    o.append("s_and_b32 %s, %s, 3" % (s(S_TMP), s(S_TMP)))
    o.append("s_lshl_b32 %s, %s, 15" % (s(S_TMP), s(S_TMP)))
    o.append("s_lshl_b32 %s, %s, 13" % (s(S_TMP2), s(S_LW)))
    o.append("s_add_u32 m0, %s, %s" % (s(S_TMP), s(S_TMP2)))
    o.append("s_nop 0")
    for k in range(4):
        o.append("buffer_load_dwordx4 %s, %s, %s offen offset:%d lds" % (v(V_L16), s(S_WS, 4), s(S_SOFF), k * 1024))
    o.append("s_add_u32 m0, m0, 4096")
    o.append("s_add_u32 %s, %s, 4096" % (s(S_SOFF), s(S_SOFF)))
    for k in range(4):
        o.append("buffer_load_dwordx4 %s, %s, %s offen offset:%d lds" % (v(V_L16), s(S_WS, 4), s(S_SOFF), k * 1024))
    return o

PEND0 = [fr(0), fr(1), fr(2), fr(3)]
def body_stream(u):
    b = flatten(period(0, slow_label=u + "_sA")) + flatten(period(1, slow_label=u + "_sB"))
    b, p1 = add_waits(b, PEND0)
    assert p1 == PEND0, p1
    return b
def advance():
    return ["s_add_u32 %s, %s, 1" % (s(S_T), s(S_T)),
            "s_add_u32 %s, %s, 1" % (s(S_TMP), s(S_T)),
            "s_and_b32 %s, %s, 3" % (s(S_TMP), s(S_TMP)),
            "s_lshl_b32 %s, %s, 15" % (s(S_TMP), s(S_TMP)),
            "v_mov_b32 %s, %s" % (v(V_VA), v(V_KA)),
            "v_add_u32 %s, %s, %s" % (v(V_KA), s(S_TMP), v(V_L16))]

def main_part(A, L, lo, slows):
    I = A.I
    r = "lo" if lo else "hi"
    top = ["s_waitcnt vmcnt(8)", "s_barrier"] if lo else ["s_barrier"]
    if lo: top += dma_block()
    I("s_cmp_eq_u32 %s, 0" % s(S_TL)); I("s_cbranch_scc1 %s" % L(r + "_final"))
    I("s_cmp_eq_u32 %s, 1" % s(S_TL)); I("s_cbranch_scc1 %s" % L(r + "_peel"))
    I("s_sub_u32 %s, %s, 1" % (s(29), s(S_TL)))
    A.L(L(r + "_loop"))
    A.ext(top)
    A.ext(body_stream(L(r + "_l")))
    slows += [(L(r + "_l_sA"), 0), (L(r + "_l_sB"), 1)]
    A.ext(advance())
    I("s_cmp_lt_u32 %s, %s" % (s(S_T), s(29)))
    I("s_cbranch_scc1 %s" % L(r + "_loop"))
    A.L(L(r + "_peel"))
    A.ext(top)
    A.ext(mask_block(0))
    A.ext(body_stream(L(r + "_p")))
    slows += [(L(r + "_p_sA"), 0), (L(r + "_p_sB"), 1)]
    A.ext(advance())
    A.L(L(r + "_final"))
    if lo:
        A.ext(top)
    else:
        I("s_cmp_gt_u32 %s, %s" % (s(S_T), s(S_NT2)))
        I("s_cbranch_scc1 %s" % L(r + "_final_nobar"))
        I("s_barrier")
        A.L(L(r + "_final_nobar"))
    A.ext(mask_block(1))
    fin = flatten(period(0, slow_label=L(r + "_f_sA"), do_kpre=False)) + flatten(period(1, do_qk=False, do_tree=False, do_kpre=False))
    fin, p2 = add_waits(fin, PEND0)
    assert p2 == [], p2
    slows += [(L(r + "_f_sA"), 0)]
    A.ext(fin)
    I("s_nop 7")
    for qt in range(2):
        l0 = v(V_L + 2 * qt)
        I("v_add_f32 %s, %s, %s" % (l0, l0, v(V_L + 2 * qt + 1)))
        A.ext(xreduce("v_add_f32", l0, v(V_T)))
        I("v_rcp_f32 %s, %s" % (l0, l0)); I("s_nop 1")
    for qt in range(2):
        I("s_lshl_b32 s36, %s, 1" % s(S_TB))
        if qt: I("s_add_u32 s36, s36, 1")
        I("s_mul_i32 s36, s36, %d" % NSLAB)
        I("s_lshl_b32 s37, %s, 2" % s(S_H))
        I("s_add_u32 s36, s36, s37")
        I("s_lshl_b32 s36, s36, 10")
        I("s_add_u32 s36, s36, 0x%x" % AM_OFF)
        for s_ in range(4):
            dst = V_F + 4 * (qt * 4 + s_)
            for half in range(2):
                base = V_O + ((2 * s_ + half) * 2 + qt) * 4
                for r_ in range(4):
                    I("v_mul_f32 %s, %s, %s" % (v(base + r_), v(base + r_), v(V_L + 2 * qt)))
                for k in range(2):
                    I("v_cvt_pk_bf16_f32 %s, %s, %s" % (v(dst + 2 * half + k), v(base + 2 * k), v(base + 2 * k + 1)))
            I("buffer_store_dwordx4 %s, %s, %s, s36 offen offset:%d" % (v(dst, 4), v(V_L16), s(S_WS, 4), s_ * 1024))
    if lo:
        A.L(L("ldloop"))
        I("s_add_u32 %s, %s, 1" % (s(S_T), s(S_T)))
        I("s_cmp_gt_u32 %s, %s" % (s(S_T), s(S_NT2)))
        I("s_cbranch_scc1 %s" % L("done"))
        I("s_waitcnt vmcnt(8)")
        I("s_barrier")
        A.ext(dma_block())
        I("s_branch %s" % L("ldloop"))
    else:
        I("s_branch %s" % L("done"))

def gen_p2(name="p2_kernel", timing=False):
    A = Asm()
    A.ext(kernel_header(name))
    L = lambda x: name + "_" + x
    I = A.I
    I("s_cmp_ge_u32 s2, 256")
    I("s_cbranch_scc1 %s" % L("end"))
    I("s_load_dwordx2 s[4:5], s[0:1], 112")
    I("s_load_dwordx2 s[52:53], s[0:1], 40")
    I("s_load_dwordx2 s[56:57], s[0:1], 72")
    if timing:
        I("s_memtime s[44:45]")
        I("s_memrealtime s[48:49]")
    I("v_lshrrev_b32 v20, 6, v0")
    I("v_and_b32 v21, 63, v0")
    I("v_readfirstlane_b32 s38, v20")
    I("v_lshlrev_b32 %s, 4, v21" % v(V_L16))
    I("s_and_b32 s30, s2, 7")
    I("s_lshr_b32 s31, s2, 3")
    I("s_and_b32 s32, s31, 3")
    I("s_lshl_b32 %s, s30, 2" % s(S_H))
    I("s_add_u32 %s, %s, s32" % (s(S_H), s(S_H)))
    I("s_lshr_b32 s33, s2, 5")
    I("s_lshr_b32 %s, s38, 2" % s(S_GRP))
    I("s_and_b32 %s, s38, 3" % s(S_LW))
    I("s_sub_u32 s34, 15, s33")
    I("s_sub_u32 s35, 3, %s" % s(S_LW))
    I("s_cmp_eq_u32 %s, 0" % s(S_GRP))
    I("s_cselect_b32 s34, s34, s33")
    I("s_cselect_b32 s35, %s, s35" % s(S_LW))
    I("s_lshl_b32 %s, s34, 2" % s(S_TB))
    I("s_add_u32 %s, %s, s35" % (s(S_TB), s(S_TB)))
    I("s_lshr_b32 s36, s35, 1")
    I("s_lshl_b32 %s, s34, 1" % s(S_TL))
    I("s_add_u32 %s, %s, s36" % (s(S_TL), s(S_TL)))
    I("s_lshl_b32 s36, s33, 1")
    I("s_sub_u32 %s, 30, s36" % s(S_NT2))
    I("s_mov_b32 %s, 0x%x" % (s(S_THR), 0x41000000))
    I("s_waitcnt lgkmcnt(0)")
    I("s_and_b32 s5, s5, 0xffff")
    I("s_mov_b32 s6, 0x%x" % WS_BYTES)
    I("s_mov_b32 s7, 0x00020000")
    I("s_lshl_b32 %s, %s, 20" % (s(S_KVB), s(S_H)))
    I("s_add_u32 %s, %s, 0x%x" % (s(S_KVB), s(S_KVB), KV_OFF))
    I("s_lshl_b32 s36, %s, 13" % s(S_LW))
    I("s_add_u32 %s, %s, s36" % (s(S_KVB), s(S_KVB)))
    I("s_lshl_b32 s36, %s, 6" % s(S_H))
    I("s_add_u32 s36, s36, %s" % s(S_TB))
    I("s_lshl_b32 s36, s36, 13")
    if QF_OFF: I("s_add_u32 s36, s36, 0x%x" % QF_OFF)
    for k in range(4):
        I("buffer_load_dwordx4 %s, %s, %s, s36 offen offset:%d" % (v(V_Q + 4 * k, 4), v(V_L16), s(S_WS, 4), k * 1024))
    I("s_add_u32 s36, s36, 4096")
    for k in range(4):
        I("buffer_load_dwordx4 %s, %s, %s, s36 offen offset:%d" % (v(V_Q + 16 + 4 * k, 4), v(V_L16), s(S_WS, 4), k * 1024))
    I("v_and_b32 v22, 15, v21")
    I("s_lshl_b32 s36, %s, 5" % s(S_TB))
    I("s_lshl_b32 s37, %s, 6" % s(S_TL))
    I("s_sub_u32 s36, s36, s37")
    I("v_lshrrev_b32 v23, 4, v21")
    I("v_lshlrev_b32 v23, 2, v23")
    I("v_sub_u32 v22, v22, v23")
    I("v_add_u32 %s, s36, v22" % v(V_THR))
    I("v_mov_b32 %s, 0xf149f2ca" % v(V_NEG))
    for r in range(64): I("v_mov_b32 %s, 0" % v(V_O + r))
    for r in range(32): I("v_mov_b32 %s, 0" % v(V_CA + r))
    for r in range(4): I("v_mov_b32 %s, 0" % v(V_L + r))
    I("v_mov_b32 %s, %s" % (v(V_VA), v(V_L16)))
    I("v_add_u32 %s, 0x8000, %s" % (v(V_KA), v(V_L16)))
    I("s_cmp_eq_u32 %s, 0" % s(S_GRP))
    I("s_cbranch_scc1 %s" % L("pro_hi"))
    for t in (-3, -2, -1):
        I("s_mov_b32 %s, %d" % (s(S_T), t))
        A.ext(dma_block())
    if not OPT.get("nopf"):
        I("s_and_b32 s53, s53, 0xffff"); I("s_mov_b32 s54, 0x400000"); I("s_mov_b32 s55, 0x00020000")
        I("s_and_b32 s57, s57, 0xffff"); I("s_mov_b32 s58, %d" % (1376 * 1024)); I("s_mov_b32 s59, 0x00020000")
        I("s_lshl_b32 s36, s2, 14"); I("s_lshl_b32 s37, %s, 12" % s(S_LW)); I("s_add_u32 s36, s36, s37")
        for k in range(4):
            I("buffer_load_dwordx4 v[24:27], %s, s[52:55], s36 offen offset:%d" % (v(V_L16), k * 1024))
        I("s_lshl_b32 s36, s2, 13"); I("s_lshl_b32 s37, %s, 11" % s(S_LW)); I("s_add_u32 s36, s36, s37")
        for k in range(2):
            I("buffer_load_dwordx4 v[28:31], %s, s[56:59], s36 offen offset:%d" % (v(V_L16), k * 1024))
        I("s_waitcnt vmcnt(22)")
    else:
        I("s_waitcnt vmcnt(16)")
    I("s_branch %s" % L("pro_j"))
    A.L(L("pro_hi"))
    I("s_waitcnt vmcnt(0)")
    A.L(L("pro_j"))
    I("s_mov_b32 %s, 0" % s(S_T))
    I("s_barrier")
    I("s_cmp_lg_u32 %s, 0" % s(S_TL))
    I("s_cbranch_scc1 %s" % L("pro_nomask"))
    A.ext(mask_block(0))
    A.L(L("pro_nomask"))
    for kt in range(2):
        for s_ in range(4):
            I(rd(kt * 4 + s_, V_VA, koff(0, kt, s_)))
    I("s_waitcnt lgkmcnt(0)")
    for kt in range(2):
        for qt in range(2):
            for s_ in range(4):
                d = V_SA + (kt * 2 + qt) * 4
                I(mf(d, fr(kt * 4 + s_), V_Q + (qt * 4 + s_) * 4, (V_CA + (kt * 2 + qt) * 4) if s_ == 0 else d))
    for s_ in range(4):
        I(rd(s_, V_VA, koff(1, 0, s_)))
    I("s_nop 7")
    t = lambda i: v(V_T + i)
    y = lambda kt, qt, r: v(V_SA + (kt * 2 + qt) * 4 + r)
    for qt in range(2):
        I("v_max3_f32 %s, %s, %s, %s" % (t(qt), y(0, qt, 0), y(0, qt, 1), y(0, qt, 2)))
        I("v_max3_f32 %s, %s, %s, %s" % (t(2), y(0, qt, 3), y(1, qt, 0), y(1, qt, 1)))
        I("v_max3_f32 %s, %s, %s, %s" % (t(qt), t(qt), y(1, qt, 2), y(1, qt, 3)))
        I("v_max_f32 %s, %s, %s" % (t(qt), t(qt), t(2)))
        A.ext(xreduce("v_max_f32", t(qt), t(4)))
    for kt in range(2):
        for qt in range(2):
            for r in range(4):
                i = (kt * 2 + qt) * 4 + r
                for b in (V_SA, V_CA, V_CB):
                    I("v_sub_f32 %s, %s, %s" % (v(b + i), v(b + i), t(qt)))
    I("s_nop 1")
    slows = []
    I("s_cmp_eq_u32 %s, 0" % s(S_GRP))
    I("s_cbranch_scc0 %s" % L("lo_main"))
    main_part(A, L, False, slows)
    A.L(L("lo_main"))
    main_part(A, L, True, slows)
    A.L(L("done"))
    if timing:
        I("s_waitcnt vmcnt(0)")
        I("s_memtime s[46:47]")
        I("s_memrealtime s[50:51]")
        I("s_waitcnt lgkmcnt(0)")
        I("s_sub_u32 s50, s50, s48")
        I("s_sub_u32 s46, s46, s44")
        I("s_lshl_b32 s36, s2, 3")
        I("s_add_u32 s36, s36, s38")
        I("s_lshl_b32 s36, s36, 2")
        I("s_add_u32 s36, s36, 0x%x" % (96 << 20))
        I("v_mov_b32 v20, s46")
        I("v_mov_b32 v21, 0")
        I("buffer_store_dword v20, v21, %s, s36 offen" % s(S_WS, 4))
        I("v_mov_b32 v22, s50")
        I("s_add_u32 s36, s36, 0x10000")
        I("buffer_store_dword v22, v21, %s, s36 offen" % s(S_WS, 4))
        I("v_mov_b32 v22, s48")
        I("s_add_u32 s36, s36, 0x10000")
        I("buffer_store_dword v22, v21, %s, s36 offen" % s(S_WS, 4))
    I("s_waitcnt vmcnt(0)")
    A.L(L("end"))
    I("s_endpgm")
    for nm, par in slows:
        A.ext(slow_path(nm, par))
    return A, kernel_desc(name, NV, 64, NV)

if __name__ == "__main__":
    import sys
    for a_ in sys.argv[1:]: OPT[a_] = True
    A, desc = gen_p2(timing=True)
    p = Prog(A.lines)
    errs = p.check_hazards()
    for e in errs: print(e)
    hdr = "; @launch kernel=p2_kernel grid=(256,1,1) block=(512,1,1) lds=131072\n.amdgcn_target \"amdgcn-amd-amdhsa--gfx950\"\n.text\n"
    open("p2.s", "w").write(hdr + A.text() + ".section .rodata,\"a\"\n.p2align 6\n" + desc + "\n")
    print("instrs:", len(p.ins))
```
